```python
import torch

def _softmax(x, axis=-1):
    return torch.softmax(x, dim=axis)
def _gelu(x):
    return torch.nn.functional.gelu(x, approximate="tanh")
def _silu(x):
    return torch.nn.functional.silu(x)
def _sigmoid(x):
    return torch.sigmoid(x)
def _layernorm(x, axis=-1, eps=1e-5):
    m = x.mean(dim=axis, keepdim=True)
    v = x.var(dim=axis, keepdim=True, unbiased=False)
    return (x - m) / torch.sqrt(v + eps)
def _scatter_add(tgt, idx, src, axis=0):
    return tgt.clone().index_add_(axis, idx, src)
def _segment_sum(src, seg, n):
    out = torch.zeros((n,) + src.shape[1:], dtype=src.dtype)
    return out.index_add_(0, seg, src)
def _pad(x, pw):
    flat = tuple(v for pair in reversed(pw) for v in pair)
    return torch.nn.functional.pad(x, flat)

kernel_name = 'gated_mix__grouped_kv_mqa__ssm_conv_h3__prompt'

def setup_inputs():

    _w = (lambda a: (lambda t: t.to(torch.bfloat16) if t.is_floating_point() else t)(torch.as_tensor(a)))
    def _A_setup():
        B, S, D, H = 1, 2048, 576, 32
        Dh = D // H
        return {
            "x": _w((lambda *s: torch.randn(*s, dtype=torch.bfloat16) * 0.05)(B, S, D)),
            "wq": _w((lambda *s: torch.randn(*s, dtype=torch.bfloat16) * 0.8)(D, H * Dh)),
            "wk": _w((lambda *s: torch.randn(*s, dtype=torch.bfloat16) * 0.8)(D, Dh)),
            "wv": _w((lambda *s: torch.randn(*s, dtype=torch.bfloat16) * 0.05)(D, Dh)),
            "wo": _w((lambda *s: torch.randn(*s, dtype=torch.bfloat16) * 0.05)(H * Dh, D)),
        }
    _A_in = _A_setup()

    def _B_setup():
        B, S, D = 1, 2048, 576
        ks = 4
        return {
            "q": _w((lambda *s: torch.randn(*s, dtype=torch.bfloat16) * 0.05)(B, S, D)),
            "k": _w((lambda *s: torch.randn(*s, dtype=torch.bfloat16) * 0.4)(B, S, D)),
            "v": _w((lambda *s: torch.randn(*s, dtype=torch.bfloat16) * 0.2)(B, S, D)),
            "shift_k": _w((lambda *s: torch.randn(*s, dtype=torch.bfloat16) * 0.4)(D, ks) * 0.5),
            "ssm_k": _w((lambda *s: torch.randn(*s, dtype=torch.bfloat16) * 0.4)(D, S) * (1.0 / S ** 0.5)),
            "ssm_D": _w((lambda *s: torch.randn(*s, dtype=torch.bfloat16) * 0.2)(D)),
        }
    _B_in = _B_setup()

    return {
        "A_x": _A_in["x"],
        "A_wq": _A_in["wq"],
        "A_wk": _A_in["wk"],
        "A_wv": _A_in["wv"],
        "A_wo": _A_in["wo"],
        "B_q": _B_in["q"],
        "B_k": _B_in["k"],
        "B_v": _B_in["v"],
        "B_shift_k": _B_in["shift_k"],
        "B_ssm_k": _B_in["ssm_k"],
        "B_ssm_D": _B_in["ssm_D"],
        "gate_w": _w((lambda *s: torch.randn(*s, dtype=torch.bfloat16) * 0.05)(576) * 16.0),
    }

def reference(A_x, A_wq, A_wk, A_wv, A_wo, B_q, B_k, B_v, B_shift_k, B_ssm_k, B_ssm_D, gate_w):
    def _A_ref(x, wq, wk, wv, wo):
        B, S, D = x.shape
        H = 32
        Dh = D // H
        q = (lambda x, *d: x.permute(*d))((x @ wq).reshape(B, S, H, Dh), 0, 2, 1, 3)
        k = x @ wk
        v = x @ wv
        scores = torch.einsum("bhqd,bkd->bhqk", q, k) * (Dh ** -0.5)
        p = _softmax(scores, axis=-1)
        o = torch.einsum("bhqk,bkd->bhqd", p, v)
        return (lambda x, *d: x.permute(*d))(o, 0, 2, 1, 3).reshape(B, S, H * Dh) @ wo

    def _B_ref(q, k, v, shift_k, ssm_k, ssm_D):
        B, S, D = q.shape
        ks = shift_k.shape[-1]
        k_pad = _pad(k, ((0, 0), (ks - 1, 0), (0, 0)))
        k_shift = torch.zeros_like(k)
        for t in range(ks):
            k_shift = k_shift + k_pad[:, t:t + S, :] * shift_k[:, ks - 1 - t][None, None, :]
        kv = k_shift * v
        L = 2 * S
        kv_pad = _pad(kv, ((0, 0), (0, S), (0, 0)))
        kf_pad = _pad(ssm_k, ((0, 0), (0, S)))
        kv_f = (lambda x, axes=(-2,-1): torch.fft.rfft2(x.float(), dim=axes))(kv_pad[:, None, :, :], axes=(1, 2))
        kf_f = (lambda x, axes=(-2,-1): torch.fft.rfft2(x.float(), dim=axes))(kf_pad[:, None, :], axes=(1, 2))
        kf_f = (lambda x, *d: x.permute(*d))(kf_f, 1, 2, 0)
        y_f = kv_f * kf_f[None, :, :, :]
        y = (lambda x, s, axes=(-2,-1): torch.fft.irfft2(x, s=s, dim=axes).to(torch.bfloat16))(y_f, (1, L), axes=(1, 2))[:, 0, :S, :]
        y = y + kv * ssm_D[None, None, :]
        return q * y

    x = A_x
    g = _sigmoid((x * gate_w).sum(-1, keepdims=True))
    a = _A_ref(x, A_wq, A_wk, A_wv, A_wo)
    b = _B_ref(x, B_k, B_v, B_shift_k, B_ssm_k, B_ssm_D)
    return g * a + (1 - g) * b
```

```python
import math, sys, os

NAME = "gated_mix__grouped_kv_mqa__ssm_conv_h3__prompt"

WS_KV = 0
TILE_B = 2336
KV_BYTES = 64 * TILE_B
WS_Q = 0x40000
WS_G = 0x280000
WS_UR = 0x290000
UR_COPY = 4128
UR_CH = 8256
WS_O = 0x720000
WS_Y = 0x960000
WS_SIZE = 0x1000000
OOB = 0x7FFFFF00

QSCALE = (18 ** -0.5) * math.log2(math.e)


def f32bits(x):
    import struct
    return struct.unpack('<I', struct.pack('<f', x))[0]


class Asm:
    def __init__(self):
        self.lines = []

    def __call__(self, s):
        for ln in s.split('\n'):
            ln = ln.strip()
            if ln:
                self.lines.append(('    ' + ln) if not ln.endswith(':') else ln)

    def c(self, s):
        self.lines.append('    ; ' + s)

    def srd(self, d, b, nbytes):
        self(f'''s_mov_b32 s{d}, s{b}
                 s_and_b32 s{d+1}, s{b+1}, 0xffff
                 s_mov_b32 s{d+2}, {nbytes}
                 s_mov_b32 s{d+3}, 0x00020000''')

    def text(self):
        return '\n'.join(self.lines) + '\n'


def vr(a, n):
    return f'v[{a}:{a+n-1}]' if n > 1 else f'v{a}'


def gemm_chunk(a, ng, c, R, bi_off, last_alias=None):
    tiles = [0, 1, 2] if ng == 0 else [3, 4]
    nrd = 1 + 2 * len(tiles)

    def reads(ks, buf):
        a(f'ds_read_b128 {vr(R["B"][buf], 4)}, v{R["aB"]} offset:{bi_off(ks)}')
        for x, nt in enumerate(tiles):
            d = R['A'][buf] + 4 * x
            if nt < 4:
                off = (ks - 6 * c) * 4096
                a(f'ds_read_b64_tr_b16 {vr(d, 2)}, v{R["aA"][x]} offset:{off}')
                a(f'ds_read_b64_tr_b16 {vr(d+2, 2)}, v{R["aA"][x]} offset:{off+512}')
            else:
                off = ks * 512
                a(f'ds_read_b64_tr_b16 {vr(d, 2)}, v{R["aA"][x]} offset:{off}')
                a(f'ds_read_b64_tr_b16 {vr(d+2, 2)}, v{R["aA"][x]} offset:{off+64}')

    kss = list(range(6 * c, 6 * c + 6))
    reads(kss[0], 0)
    for i, ks in enumerate(kss):
        buf = i & 1
        if i + 1 < 6:
            if last_alias is not None and kss[i + 1] == 17:
                a('s_waitcnt vmcnt(0)')
            reads(kss[i + 1], buf ^ 1)
            a(f's_waitcnt lgkmcnt({nrd})')
        else:
            a('s_waitcnt lgkmcnt(0)')
        for x, nt in enumerate(tiles):
            acc = R['acc'] + 4 * x
            cin = '0' if ks == 0 else vr(acc, 4)
            a(f'v_mfma_f32_16x16x32_bf16 {vr(acc,4)}, {vr(R["A"][buf]+4*x,4)}, {vr(R["B"][buf],4)}, {cin}')
    if c < 2:
        for x, nt in enumerate(tiles):
            if nt < 4:
                a(f'v_add_u32 v{R["aA"][x]}, {6*4096}, v{R["aA"][x]}')


def gemm_addr_setup(a, R, L_WA, L_WB, L_WC, vlane, t0, t1, t2, s_ng):
    a(f'''v_lshrrev_b32 v{t0}, 4, v{vlane}
          v_lshlrev_b32 v{t0}, 3, v{t0}
          v_bfe_u32 v{t1}, v{vlane}, 2, 2
          v_add_u32 v{t0}, v{t0}, v{t1}''')
    a(f'''v_bfe_u32 v{t1}, v{vlane}, 3, 1
          v_bfe_u32 v{t2}, v{vlane}, 4, 1
          v_lshl_or_b32 v{t1}, v{t2}, 1, v{t1}''')
    a(f'''v_and_b32 v{t2}, 3, v{vlane}
          v_lshlrev_b32 v{t2}, 3, v{t2}
          v_lshl_add_u32 v{t2}, v{t0}, 7, v{t2}
          v_add_u32 v{t2}, {L_WA}, v{t2}''')
    a(f's_mul_i32 s40, s{s_ng}, 3')
    a(f'''v_xor_b32 v{R["aA"][0]}, s40, v{t1}
          v_lshl_add_u32 v{R["aA"][0]}, v{R["aA"][0]}, 5, v{t2}
          v_xor_b32 v{R["aA"][1]}, 1, v{t1}
          v_lshl_add_u32 v{R["aA"][1]}, v{R["aA"][1]}, 5, v{t2}
          v_xor_b32 v{R["aA"][2]}, 2, v{t1}
          v_lshl_add_u32 v{R["aA"][2]}, v{R["aA"][2]}, 5, v{t2}''')
    a(f'''v_and_b32 v{t1}, 1, v{vlane}
          v_lshlrev_b32 v{t1}, 3, v{t1}
          v_lshl_add_u32 v{t1}, v{t0}, 4, v{t1}
          v_bfe_u32 v{t2}, v{vlane}, 1, 1
          v_mul_u32_u24 v{t2}, {L_WC-L_WB}, v{t2}
          v_add3_u32 v{t1}, v{t1}, v{t2}, v{t2}
          v_sub_u32 v{t1}, v{t1}, v{t2}
          v_add_u32 v{t1}, {L_WB}, v{t1}
          s_cmp_eq_u32 s{s_ng}, 1
          s_cselect_b64 vcc, -1, 0
          v_cndmask_b32 v{R["aA"][1]}, v{R["aA"][1]}, v{t1}, vcc''')


def gen_k1():
    a = Asm()
    L_XI = 0
    L_WA = 4 * 17 * 1024
    L_WB = L_WA + 576 * 128
    L_WC = L_WB + 576 * 16 + 64
    LDS = L_WC + 576 * 16
    a('k1_kernel:')
    a('''s_cmp_ge_u32 s2, 256
         s_cbranch_scc1 L_k1_end
         s_load_dwordx4 s[4:7], s[0:1], 0
         s_load_dwordx4 s[8:11], s[0:1], 16
         s_load_dwordx4 s[12:15], s[0:1], 48
         s_load_dwordx2 s[16:17], s[0:1], 64
         s_load_dwordx2 s[18:19], s[0:1], 88
         s_load_dwordx2 s[20:21], s[0:1], 112
         v_lshrrev_b32 v1, 6, v0
         v_and_b32 v0, 63, v0
         v_readfirstlane_b32 s3, v1
         s_and_b32 s22, s2, 7
         s_lshr_b32 s23, s2, 6
         s_lshl_b32 s23, s23, 3
         s_or_b32 s22, s22, s23
         s_lshr_b32 s23, s2, 3
         s_and_b32 s23, s23, 7''')
    a('''s_and_b32 s24, s3, 3
         s_lshr_b32 s25, s3, 2
         s_mul_i32 s26, s22, 73728
         s_mul_i32 s27, s23, 144''')
    a(f'''s_mul_i32 s28, s3, 9216
          s_add_u32 s28, s28, s26
          s_add_u32 s28, s28, s27
          v_lshlrev_b32 v2, 2, v0
          v_add_u32 v2, s28, v2
          v_cmp_gt_u32 vcc, 36, v0
          v_mov_b32 v4, {OOB}
          s_nop 0
          v_cndmask_b32 v2, v4, v2, vcc
          v_subrev_u32 v3, 4608, v2
          s_mul_i32 s29, s23, 576
          v_lshlrev_b32 v5, 4, v0
          v_add_u32 v5, s29, v5
          v_cndmask_b32 v5, v4, v5, vcc''')
    for j in range(1, 8):
        a(f's_mov_b32 s{40+j}, {1152*j}')
    a('s_waitcnt lgkmcnt(0)')
    a.srd(48, 12, 2359296)
    a.srd(52, 14, 2359296)
    a.srd(56, 16, 4608)
    a.srd(60, 4, 2359296)
    a.srd(64, 6, 663552)
    a.srd(68, 20, WS_SIZE)
    a('''s_cmp_lt_u32 s23, 3
         s_cselect_b32 s72, s8, s10
         s_cselect_b32 s73, s9, s11
         s_and_b32 s73, s73, 0xffff
         s_mov_b32 s74, 20736
         s_mov_b32 s75, 0x00020000''')
    a.srd(76, 18, 1152)
    KK, VV, SK = 64, 76, 88
    a(f'''s_mul_i32 s34, s3, 72
          v_add_u32 v92, s34, v0
          v_lshlrev_b32 v93, 1, v92
          buffer_load_ushort v94, v93, s[76:79], 0 offen
          buffer_load_ushort v95, v93, s[76:79], 0 offen offset:16
          v_lshlrev_b32 v92, 4, v92
          v_add_u32 v92, {L_WC}, v92''')
    a(f'buffer_load_dwordx4 v[{SK}:{SK+3}], v5, s[56:59], 0 offen')
    for j in range(4):
        so = '0' if j == 0 else f's{40+j}'
        a(f'buffer_load_dword v{KK+j}, v3, s[48:51], {so} offen')
    for j in range(8):
        so = '0' if j == 0 else f's{40+j}'
        a(f'buffer_load_dword v{KK+4+j}, v2, s[48:51], {so} offen')
    a(f'buffer_load_dword v{VV}, v3, s[52:55], s43 offen')
    for j in range(8):
        so = '0' if j == 0 else f's{40+j}'
        a(f'buffer_load_dword v{VV+1+j}, v2, s[52:55], {so} offen')
    a('''v_lshrrev_b32 v6, 2, v0
         v_lshrrev_b32 v7, 4, v0
         v_sub_u32 v7, 0, v7
         v_xor_b32 v7, v7, v0
         v_and_b32 v7, 3, v7
         v_lshlrev_b32 v7, 4, v7
         v_mul_u32_u24 v6, 1152, v6
         v_add_u32 v6, v6, v7
         s_mul_i32 s30, s24, 18432
         s_add_u32 s30, s30, s26''')
    a('''v_lshrrev_b32 v7, 3, v0
         v_bfe_u32 v8, v0, 4, 1
         s_and_b32 s31, s3, 1
         s_lshl_b32 s31, s31, 1
         v_or_b32 v8, s31, v8
         v_lshlrev_b32 v8, 1, v8
         v_xor_b32 v8, v8, v0
         v_and_b32 v8, 7, v8
         v_lshlrev_b32 v8, 4, v8
         v_mul_u32_u24 v7, 1152, v7
         v_add3_u32 v7, v7, v8, s27''')
    a('''v_mul_u32_u24 v8, 1152, v0
         v_add_u32 v8, s27, v8
         v_add_u32 v8, 128, v8
         s_mov_b32 s32, s23
         s_cmp_ge_u32 s23, 3
         s_cselect_b32 s33, 3, 0
         s_sub_u32 s32, s32, s33
         s_lshl_b32 s33, s32, 4
         s_cmp_eq_u32 s32, 2
         s_cselect_b32 s33, 20, s33
         v_mul_u32_u24 v9, 36, v0
         v_add_u32 v9, s33, v9''')

    def dma(vaddr, srd, soff, lds_expr_sgpr):
        a(f'''s_mov_b32 m0, s{lds_expr_sgpr}
              s_nop 0
              buffer_load_dwordx4 v{vaddr}, s[{srd}:{srd+3}], s{soff} offen lds''')

    for c in range(3):
        a(f'''s_cmp_lt_u32 s3, 3
              s_cbranch_scc0 L_k1_nwb{c}
              s_add_u32 s34, s3, {3*c}
              s_mul_i32 s35, s34, 73728
              s_lshl_b32 s34, s34, 10
              s_add_u32 s34, s34, {L_WB}''')
        dma(8, 64, 35, 34)
        a(f'''s_branch L_k1_nwc{c}
              L_k1_nwb{c}:
              s_cmp_lt_u32 s3, 6
              s_cbranch_scc0 L_k1_nwc{c}
              s_cmp_lt_u32 s23, 6
              s_cbranch_scc0 L_k1_nwc{c}
              s_add_u32 s34, s3, {3*c-3}
              s_mul_i32 s35, s34, 2304
              s_lshl_b32 s34, s34, 10
              s_add_u32 s34, s34, {L_WC}''')
        dma(9, 72, 35, 34)
        a(f'L_k1_nwc{c}:')
        for e in range(3):
            a(f'''s_mul_i32 s34, s25, 3
                  s_add_u32 s34, s34, {6*c+e}''')
            if c == 2 and e == 2:
                a('s_mov_b32 s34, 14')
            a(f'''s_lshl_b32 s35, s34, 6
                  s_add_u32 s35, s35, s30
                  s_mul_i32 s36, s24, 17
                  s_add_u32 s34, s34, s36
                  s_lshl_b32 s34, s34, 10''')
            dma(6, 60, 35, 34)
            a(f'''s_add_u32 s34, s3, {24*c+8*e}
                  s_mul_i32 s35, s34, 9216
                  s_lshl_b32 s34, s34, 10
                  s_add_u32 s34, s34, {L_WA}''')
            dma(7, 64, 35, 34)
    R = dict(aB=16, aA=[17, 18, 19], B=[20, 24], A=[28, 40], acc=52)
    gemm_addr_setup(a, R, L_WA, L_WB, L_WC, 0, 10, 11, 12, 25)
    a(f'''v_and_b32 v10, 15, v0
          v_lshrrev_b32 v11, 2, v10
          v_sub_u32 v11, 0, v11
          v_lshrrev_b32 v12, 4, v0
          v_xor_b32 v11, v11, v12
          v_and_b32 v11, 3, v11
          v_lshlrev_b32 v11, 4, v11
          v_lshl_add_u32 v{R["aB"]}, v10, 6, v11
          s_mul_i32 s34, s24, {17*1024}
          v_add_u32 v{R["aB"]}, s34, v{R["aB"]}''')
    QA = 96
    a(f'''s_and_b32 s34, s24, 1
          s_lshl_b32 s34, s34, 4
          v_add_u32 v13, s34, v10
          s_lshl_b32 s37, s22, 1
          s_lshr_b32 s34, s24, 1
          s_add_u32 s37, s37, s34
          s_lshl_b32 s37, s37, 5
          s_lshl_b32 s34, s23, 2
          s_add_u32 s37, s37, s34
          s_mul_i32 s37, s37, 1152
          s_add_u32 s37, s37, {WS_Q}
          s_mul_i32 s38, s25, 48
          v_lshlrev_b32 v12, 2, v12''')
    for x in range(3):
        for pr in range(2):
            d = QA + 2 * x + pr
            a(f'''v_add_u32 v10, s38, v12
                  v_add_u32 v10, {16*x+2*pr}, v10
                  v_mul_u32_u24 v11, 3641, v10
                  v_lshrrev_b32 v11, 16, v11
                  v_mul_u32_u24 v14, 18, v11
                  v_sub_u32 v14, v10, v14
                  v_mul_u32_u24 v11, 1152, v11
                  v_lshrrev_b32 v15, 3, v14
                  v_lshl_add_u32 v15, v15, 5, v13
                  v_lshlrev_b32 v15, 4, v15
                  v_and_b32 v{d}, 7, v14
                  v_lshl_add_u32 v15, v{d}, 1, v15
                  v_lshlrev_b32 v{d}, 2, v13
                  v_add_u32 v{d}, 1024, v{d}
                  v_cmp_gt_u32 vcc, 16, v14
                  s_nop 1
                  v_cndmask_b32 v{d}, v{d}, v15, vcc
                  v_add3_u32 v{d}, v{d}, v11, s37
                  v_cmp_gt_u32 vcc, 72, v10
                  s_nop 1
                  v_cndmask_b32 v{d}, v4, v{d}, vcc''')
    a('s_waitcnt vmcnt(18)')
    a('''s_cmp_eq_u32 s23, 6
         s_cbranch_scc0 L_k1_nogate
         ds_write_b16 v92, v94
         ds_write_b16 v92, v95 offset:128
         L_k1_nogate:''')
    LO, HI = 104, 128
    for j in range(21):
        a(f'v_lshlrev_b32 v{LO+j}, 16, v{KK+j}')
        a(f'v_and_b32 v{HI+j}, 0xffff0000, v{KK+j}')
    S = 152
    for d in range(4):
        a(f'v_lshlrev_b32 v{S+2*d}, 16, v{SK+d}')
        a(f'v_and_b32 v{S+2*d+1}, 0xffff0000, v{SK+d}')
    U = 64
    for ch, base in ((0, LO), (1, HI)):
        for tau in range(9):
            u = U + 9 * ch + tau
            a(f'v_mul_f32 v{u}, v{S+4*ch}, v{base+tau+3}')
            for i in range(1, 4):
                a(f'v_fmac_f32 v{u}, v{S+4*ch+i}, v{base+tau+3-i}')
            a(f'v_mul_f32 v{u}, v{u}, v{base+12+tau}')
    P = 104
    for ch in range(2):
        u = U + 9 * ch
        for d in range(4):
            a(f'v_cvt_pk_bf16_f32 v{P+8*ch+d}, v{u+8-2*d}, v{u+7-2*d}')
            a(f'v_cvt_pk_bf16_f32 v{P+8*ch+4+d}, v{u+7-2*d}, v{u+6-2*d}')
    a(f'''s_mul_i32 s34, s23, {72*UR_CH}
          s_lshl_b32 s35, s22, 7
          s_lshl_b32 s36, s3, 4
          s_add_u32 s35, s35, s36
          s_sub_u32 s34, s34, s35
          s_add_u32 s34, s34, {WS_UR + 4080}
          v_mul_u32_u24 v10, {2*UR_CH}, v0
          v_add_u32 v10, s34, v10
          v_cmp_gt_u32 vcc, 36, v0
          s_mov_b32 s35, {UR_COPY}
          s_mov_b32 s36, {UR_CH}
          v_cndmask_b32 v10, v4, v10, vcc
          s_mov_b32 s39, {UR_CH+UR_COPY}
          buffer_store_dwordx4 v[{P}:{P+3}], v10, s[68:71], 0 offen
          buffer_store_dwordx4 v[{P+4}:{P+7}], v10, s[68:71], s35 offen
          buffer_store_dwordx4 v[{P+8}:{P+11}], v10, s[68:71], s36 offen
          buffer_store_dwordx4 v[{P+12}:{P+15}], v10, s[68:71], s39 offen''')
    a('''s_cmp_eq_u32 s25, 1
         s_cbranch_scc1 L_k1_g1''')
    for ng in range(2):
        if ng == 1:
            a('L_k1_g1:')

        def bi_off(ks, ng=ng):
            return (ks if ks < 17 else ng) * 1024
        a('s_waitcnt vmcnt(16) lgkmcnt(0)\ns_barrier')
        gemm_chunk(a, ng, 0, R, bi_off)
        a('s_waitcnt vmcnt(10)\ns_barrier')
        a(f'''s_add_u32 s35, s30, {17*64}
              s_mul_i32 s34, s24, {17*1024}
              s_add_u32 s34, s34, {ng*1024}''')
        dma(6, 60, 35, 34)
        gemm_chunk(a, ng, 1, R, bi_off)
        a('s_waitcnt vmcnt(5)\ns_barrier')
        gemm_chunk(a, ng, 2, R, bi_off, last_alias=True)
        a('s_nop 7')
        ntile = 3 if ng == 0 else 2
        a(f's_mov_b32 s34, {f32bits(QSCALE)}')
        for x in range(ntile):
            acc = R['acc'] + 4 * x
            for r in range(4):
                a(f'v_mul_f32 v{20+4*x+r}, s34, v{acc+r}')
            a(f'v_cvt_pk_bf16_f32 v{32+2*x}, v{20+4*x}, v{21+4*x}')
            a(f'v_cvt_pk_bf16_f32 v{33+2*x}, v{22+4*x}, v{23+4*x}')
            a(f'buffer_store_dword v{32+2*x}, v{QA+2*x}, s[68:71], 0 offen')
            a(f'buffer_store_dword v{33+2*x}, v{QA+2*x+1}, s[68:71], 0 offen')
        if ng == 0:
            a(f'''s_cmp_eq_u32 s22, 0
                  s_cbranch_scc0 L_k1_nopad
                  s_cmp_eq_u32 s3, 0
                  s_cbranch_scc0 L_k1_nopad
                  v_mov_b32 v40, 0
                  v_mov_b32 v41, 0
                  v_mov_b32 v42, 0
                  v_mov_b32 v43, 0
                  buffer_store_dwordx4 v[40:43], v10, s[68:71], 0 offen offset:16
                  buffer_store_dwordx4 v[40:43], v10, s[68:71], 0 offen offset:32
                  buffer_store_dwordx4 v[40:43], v10, s[68:71], s36 offen offset:16
                  buffer_store_dwordx4 v[40:43], v10, s[68:71], s36 offen offset:32
                  s_mov_b32 s35, {UR_COPY}
                  buffer_store_dwordx4 v[40:43], v10, s[68:71], s35 offen offset:16
                  buffer_store_dwordx4 v[40:43], v10, s[68:71], s35 offen offset:32
                  buffer_store_dwordx4 v[40:43], v10, s[68:71], s39 offen offset:16
                  buffer_store_dwordx4 v[40:43], v10, s[68:71], s39 offen offset:32
                  L_k1_nopad:
                  s_cmp_eq_u32 s23, 7
                  s_cbranch_scc0 L_k1_end
                  s_cmp_eq_u32 s3, 1
                  s_cbranch_scc0 L_k1_end''')
            a(f'''v_lshrrev_b32 v10, 1, v0
                  v_mul_u32_u24 v10, {TILE_B}, v10
                  v_and_b32 v11, 1, v0
                  v_mul_u32_u24 v11, 592, v11
                  s_mul_i32 s34, s22, {2*TILE_B}
                  s_add_u32 s34, s34, {WS_KV + 1152 + 576}
                  v_add3_u32 v10, v10, v11, s34
                  v_cmp_gt_u32 vcc, 4, v0
                  v_mov_b32 v40, 0x3f803f80
                  v_mov_b32 v41, 0x3f803f80
                  v_cndmask_b32 v10, v4, v10, vcc
                  v_mov_b32 v42, 0x3f803f80
                  v_mov_b32 v43, 0x3f803f80
                  buffer_store_dwordx4 v[40:43], v10, s[68:71], 0 offen
                  s_branch L_k1_end''')
        else:
            E = R['acc'] + 4
            a(f'''s_lshl_b32 s34, s22, 1
                  s_lshr_b32 s35, s24, 1
                  s_add_u32 s34, s34, s35
                  s_mul_i32 s34, s34, {TILE_B}
                  s_add_u32 s34, s34, {WS_KV}
                  v_bfe_u32 v11, v0, 4, 1
                  v_cvt_pk_bf16_f32 v40, v{E}, v{E+1}
                  v_cvt_pk_bf16_f32 v41, v{E+2}, v{E+3}
                  s_cmp_lt_u32 s23, 2
                  s_cbranch_scc0 L_k1_e2''')
            a(f'''s_lshl_b32 s35, s23, 9
                  s_add_u32 s34, s34, s35
                  v_lshlrev_b32 v10, 4, v13
                  v_lshl_add_u32 v10, v11, 3, v10
                  v_add_u32 v10, s34, v10
                  v_cmp_lt_u32 vcc, 31, v0
                  s_nop 1
                  v_cndmask_b32 v10, v4, v10, vcc
                  buffer_store_dwordx2 v[40:41], v10, s[68:71], 0 offen
                  s_branch L_k1_end
                  L_k1_e2:
                  s_cmp_eq_u32 s23, 2
                  s_cbranch_scc0 L_k1_e3''')
            a(f'''v_lshlrev_b32 v10, 2, v13
                  v_add_u32 v10, s34, v10
                  v_cmp_lt_u32 vcc, 47, v0
                  s_nop 1
                  v_cndmask_b32 v10, v4, v10, vcc
                  buffer_store_dword v41, v10, s[68:71], 0 offen offset:1024
                  s_branch L_k1_end
                  L_k1_e3:
                  s_cmp_lt_u32 s23, 6
                  s_cbranch_scc0 L_k1_e6''')
            a(f'''s_sub_u32 s35, s23, 3
                  s_lshl_b32 s35, s35, 7
                  s_cmp_eq_u32 s23, 5
                  s_cselect_b32 s35, 160, s35
                  s_cselect_b32 s36, 47, 31
                  s_add_u32 s34, s34, s35
                  s_and_b32 s35, s24, 1
                  s_mul_i32 s35, s35, 592
                  s_add_u32 s34, s34, s35
                  v_bfe_u32 v10, v0, 3, 1
                  v_mul_u32_u24 v10, 288, v10
                  v_lshl_add_u32 v10, v11, 6, v10
                  v_and_b32 v11, 7, v0
                  v_lshl_add_u32 v10, v11, 1, v10
                  v_add_u32 v10, s34, v10
                  v_cmp_lt_u32 vcc, s36, v0
                  s_nop 1
                  v_cndmask_b32 v10, v4, v10, vcc
                  buffer_store_short v41, v10, s[68:71], 0 offen offset:{1152+32}
                  buffer_store_short_d16_hi v41, v10, s[68:71], 0 offen offset:{1152+48}
                  s_cmp_eq_u32 s23, 5
                  s_cbranch_scc1 L_k1_end
                  buffer_store_short v40, v10, s[68:71], 0 offen offset:{1152}
                  buffer_store_short_d16_hi v40, v10, s[68:71], 0 offen offset:{1152+16}
                  s_branch L_k1_end
                  L_k1_e6:
                  s_cmp_eq_u32 s23, 6
                  s_cbranch_scc0 L_k1_end''')
            a(f'''v_mul_f32 v40, {f32bits(-math.log2(math.e))}, v{E}
                  v_exp_f32 v40, v40
                  s_lshl_b32 s34, s22, 8
                  s_lshl_b32 s35, s24, 6
                  v_add_f32 v40, 1.0, v40
                  v_rcp_f32 v40, v40
                  s_add_u32 s34, s34, s35
                  s_add_u32 s34, s34, {WS_G}
                  v_and_b32 v10, 15, v0
                  v_lshlrev_b32 v10, 2, v10
                  v_add_u32 v10, s34, v10
                  v_lshrrev_b32 v11, 4, v0
                  v_cmp_eq_u32 vcc, 2, v11
                  s_nop 1
                  v_cndmask_b32 v10, v4, v10, vcc
                  buffer_store_dword v40, v10, s[68:71], 0 offen''')
    a('L_k1_end:\ns_endpgm')
    return a.text(), dict(name='k1_kernel', grid=256, block=512, lds=LDS, vgpr=160, sgpr=96)


def gen_k2():
    a = Asm()
    LDS = KV_BYTES + 4096
    a('k2_kernel:')
    a('''s_cmp_ge_u32 s2, 256
         s_cbranch_scc1 L_k2_end
         s_load_dwordx4 s[4:7], s[0:1], 72
         s_load_dwordx2 s[20:21], s[0:1], 112
         v_lshrrev_b32 v1, 6, v0
         v_and_b32 v0, 63, v0
         v_readfirstlane_b32 s3, v1
         s_and_b32 s22, s2, 7
         s_lshr_b32 s23, s2, 6
         s_lshl_b32 s23, s23, 3
         s_or_b32 s22, s22, s23
         s_lshr_b32 s23, s2, 3
         s_and_b32 s23, s23, 7
         s_waitcnt lgkmcnt(0)''')
    a.srd(68, 20, WS_SIZE)
    a(f'''s_cmp_ge_u32 s3, 8
          s_cbranch_scc1 L_k2_conv''')
    QA1, QA2, QB1, QB2 = 4, 8, 12, 10
    K1 = [16, 20]
    K2 = [24, 26]
    VA, VB = 28, 32
    IDX, aK1, aK2, aV = 36, 37, 38, 39
    NMA, NMB = 40, 41
    T0 = 42
    S = [48, 64, 80, 96]
    OA, OB = 112, 128
    a(f'''s_and_b32 s24, s3, 3
          s_lshr_b32 s25, s3, 2
          s_lshl_b32 s26, s23, 2
          s_add_u32 s26, s26, s24
          s_lshl_b32 s27, s22, 6
          s_add_u32 s27, s27, s26
          s_mul_i32 s27, s27, 1152
          s_add_u32 s27, s27, {WS_Q}
          s_add_u32 s28, s27, {32*1152}
          v_lshlrev_b32 v1, 4, v0
          v_lshlrev_b32 v2, 2, v0
          v_mov_b32 v3, {OOB}
          v_cmp_gt_u32 vcc, 32, v0
          s_nop 1
          v_cndmask_b32 v2, v3, v2, vcc
          buffer_load_dwordx4 {vr(QA1,4)}, v1, s[68:71], s27 offen
          buffer_load_dword v{QA2}, v2, s[68:71], s27 offen offset:1024
          buffer_load_dwordx4 {vr(QB1,4)}, v1, s[68:71], s28 offen
          buffer_load_dword v{QB2}, v2, s[68:71], s28 offen offset:1024''')

    def piece(expr_add):
        a(f'''s_add_u32 s30, s29, {expr_add*1024}
              s_mov_b32 m0, s30
              s_nop 0
              buffer_load_dwordx4 v1, s[68:71], s30 offen lds''')
    a('s_lshl_b32 s29, s3, 10')
    piece(0)
    piece(73)
    for i in range(8):
        piece(8 + 8 * i)
        piece(81 + 8 * i)
    a('''s_cmp_eq_u32 s3, 0
         s_cbranch_scc0 L_k2_nx''')
    piece(72)
    piece(145)
    a('L_k2_nx:')
    a(f'''v_mov_b32 v{IDX}, 0xdddd
          v_mov_b32 v{K2[0]+1}, 0x3f80
          v_mov_b32 v{K2[1]+1}, 0x3f80
          v_mov_b32 v{QA2+1}, 0
          v_mov_b32 v{QB2+1}, 0
          s_mul_i32 s31, s25, {32*TILE_B}
          v_add_u32 v{aK1}, s31, v1
          v_and_b32 v{T0}, 31, v0
          v_lshlrev_b32 v{aK2}, 2, v{T0}
          v_add_u32 v{aK2}, s31, v{aK2}
          v_lshrrev_b32 v{T0+1}, 5, v0
          v_mul_u32_u24 v{T0+1}, 288, v{T0+1}
          v_lshl_add_u32 v{T0+1}, v{T0}, 4, v{T0+1}
          v_mov_b32 v{T0+2}, 576
          v_cmp_gt_u32 vcc, 18, v{T0}
          s_nop 1
          v_cndmask_b32 v{aV}, v{T0+2}, v{T0+1}, vcc
          v_add_u32 v{aV}, s31, v{aV}
          s_mov_b32 s33, 0
          s_mov_b32 s34, 0
          s_waitcnt vmcnt(16)
          s_barrier''')

    def qk1(dst, kb, q1):
        a(f'v_mfma_f32_32x32x16_bf16 {vr(dst,16)}, {vr(K1[kb],4)}, {vr(q1,4)}, 0')

    def qk2(dst, kb, q2):
        a(f'v_mfma_f32_32x32x8_bf16 {vr(dst,16)}, {vr(K2[kb],2)}, {vr(q2,2)}, {vr(dst,16)}')

    def pv(o, v, p):
        a(f'v_smfmac_f32_32x32x32_bf16 {vr(o,16)}, {vr(v,4)}, {vr(p,8)}, v{IDX}')

    def rdK(kb, tile):
        a(f'ds_read_b128 {vr(K1[kb],4)}, v{aK1} offset:{tile*TILE_B}')
        a(f'ds_read_b32 v{K2[kb]}, v{aK2} offset:{tile*TILE_B+1024}')

    def rdV(reg, tile, half):
        a(f'ds_read_b128 {vr(reg,4)}, v{aV} offset:{tile*TILE_B+1152+592*half}')

    def maxtree(dst, s, init=None):
        if init is None:
            a(f'v_max3_f32 v{dst}, v{s}, v{s+1}, v{s+2}')
            rest = list(range(3, 16))
        else:
            rest = list(range(0, 16))
        while len(rest) >= 2:
            a(f'v_max3_f32 v{dst}, v{dst}, v{s+rest[0]}, v{s+rest[1]}')
            rest = rest[2:]
        if rest:
            a(f'v_max_f32 v{dst}, v{dst}, v{s+rest[0]}')

    def set_bias():
        for nm, q2, t in ((NMA, QA2, T0), (NMB, QB2, T0 + 1)):
            a(f'v_mov_b32 v{t}, v{nm}')
        a('s_nop 1')
        for nm, q2, t in ((NMA, QA2, T0), (NMB, QB2, T0 + 1)):
            a(f'v_permlane32_swap_b32 v{nm}, v{t}')
        a('v_cmp_gt_u32 vcc, 32, v0')
        for nm, q2, t in ((NMA, QA2, T0), (NMB, QB2, T0 + 1)):
            a(f'''v_max_f32 v{nm}, v{nm}, v{t}
                  v_cvt_pk_bf16_f32 v{t}, -v{nm}, 0
                  v_lshlrev_b32 v{nm}, 16, v{t}
                  v_cndmask_b32 v{q2+1}, 0, v{t}, vcc''')

    rdK(0, 0)
    a('s_waitcnt lgkmcnt(0)')
    qk1(S[0], 0, QA1); qk2(S[0], 0, QA2)
    qk1(S[1], 0, QB1); qk2(S[1], 0, QB2)
    a('s_nop 11')
    maxtree(NMA, S[0])
    maxtree(NMB, S[1])
    set_bias()
    a('L_k2_restart:')
    rdK(0, 0)
    rdK(1, 1)
    rdV(VA, 0, 0)
    for i in range(16):
        a(f'v_mov_b32 v{OA+i}, 0')
        a(f'v_mov_b32 v{OB+i}, 0')
    for i in range(8, 16):
        a(f'v_mov_b32 v{S[3]+i}, 0')
    for i in range(4):
        a(f'v_mov_b32 v{VB+i}, 0')
    a('s_waitcnt lgkmcnt(3)')
    qk1(S[0], 0, QA1); qk2(S[0], 0, QA2)
    a('s_mov_b32 s32, 16')
    a('s_nop 10')
    a('.p2align 6')
    a('L_k2_loop:')

    def exps(buf, lo):
        for i in range(lo, lo + 4):
            a(f'v_exp_f32 v{S[buf]+i}, v{S[buf]+i}')

    for tl in range(2):
        kb = tl & 1
        cur, nxt, prv = 2 * tl, 2 * tl + 1, (2 * tl + 3) % 4
        qk1(S[nxt], kb, QB1)
        exps(cur, 0)
        qk2(S[nxt], kb, QB2)
        exps(cur, 4)
        pv(OB, VB, S[prv] + 8)
        rdV(VB, tl, 1)
        exps(cur, 8)
        a('s_waitcnt lgkmcnt(1)')
        pv(OA, VA, S[cur])
        exps(cur, 12)
        cur, nxt, prv = 2 * tl + 1, (2 * tl + 2) % 4, 2 * tl
        qk1(S[nxt], kb ^ 1, QA1)
        exps(cur, 0)
        qk2(S[nxt], kb ^ 1, QA2)
        rdK(kb, tl + 2)
        exps(cur, 4)
        a('s_waitcnt lgkmcnt(2)')
        pv(OA, VB, S[prv] + 8)
        exps(cur, 8)
        pv(OB, VA, S[cur])
        rdV(VA, tl + 1, 0)
        exps(cur, 12)
    a(f'''v_add_u32 v{aK1}, {2*TILE_B}, v{aK1}
          v_add_u32 v{aK2}, {2*TILE_B}, v{aK2}
          v_add_u32 v{aV}, {2*TILE_B}, v{aV}
          s_cmp_eq_u32 s33, 0
          s_cbranch_scc0 L_k2_nobar
          s_mov_b32 s33, 1
          s_waitcnt vmcnt(0)
          s_barrier
          L_k2_nobar:
          s_sub_u32 s32, s32, 1
          s_cmp_lg_u32 s32, 0
          s_cbranch_scc1 L_k2_loop''')
    pv(OB, VB, S[3] + 8)
    a(f'''v_subrev_u32 v{aK1}, {32*TILE_B}, v{aK1}
          v_subrev_u32 v{aK2}, {32*TILE_B}, v{aK2}
          v_subrev_u32 v{aV}, {32*TILE_B}, v{aV}
          s_waitcnt lgkmcnt(0)
          s_nop 9''')
    a(f'''s_cmp_eq_u32 s34, 0
          s_cbranch_scc0 L_k2_ok
          v_add_f32 v{T0}, |v{OA}|, |v{OB}|''')
    for i in range(1, 10):
        a(f'v_add_f32 v{T0}, v{T0}, |v{OA+i}|')
        a(f'v_add_f32 v{T0}, v{T0}, |v{OB+i}|')
    a(f'''v_mov_b32 v{T0+2}, 0x7e800000
          v_cmp_nlt_f32 vcc, v{T0}, v{T0+2}
          v_mov_b32 v{T0+2}, 0x4f800000
          v_cmp_nlt_f32 s[36:37], v{OA+12}, v{T0+2}
          v_cmp_nlt_f32 s[38:39], v{OB+12}, v{T0+2}
          s_or_b64 vcc, vcc, s[36:37]
          s_or_b64 vcc, vcc, s[38:39]
          s_cbranch_vccz L_k2_ok''')
    a(f'''s_mov_b32 s34, 1
          v_mov_b32 v{QA2+1}, 0
          v_mov_b32 v{QB2+1}, 0
          v_mov_b32 v{NMA}, 0xff800000
          v_mov_b32 v{NMB}, 0xff800000
          s_mov_b32 s32, 32
          L_k2_mloop:''')
    rdK(0, 0)
    a(f'''v_add_u32 v{aK1}, {TILE_B}, v{aK1}
          v_add_u32 v{aK2}, {TILE_B}, v{aK2}
          s_waitcnt lgkmcnt(0)''')
    qk1(S[0], 0, QA1); qk2(S[0], 0, QA2)
    qk1(S[1], 0, QB1); qk2(S[1], 0, QB2)
    a('s_nop 11')
    maxtree(NMA, S[0], init=True)
    maxtree(NMB, S[1], init=True)
    a(f'''s_sub_u32 s32, s32, 1
          s_cmp_lg_u32 s32, 0
          s_cbranch_scc1 L_k2_mloop
          v_subrev_u32 v{aK1}, {32*TILE_B}, v{aK1}
          v_subrev_u32 v{aK2}, {32*TILE_B}, v{aK2}''')
    set_bias()
    a('s_branch L_k2_restart')
    a('L_k2_ok:')
    a('s_barrier')
    a(f'''s_mul_i32 s35, s3, 3072
          s_xor_b32 s36, s3, 4
          s_mul_i32 s36, s36, 3072
          v_add_u32 v{T0}, s35, v1
          v_add_u32 v{T0+1}, s36, v1
          s_cmp_eq_u32 s25, 0
          s_cbranch_scc1 L_k2_x0''')
    for i in list(range(10)) + [12]:
        a(f'v_swap_b32 v{OA+i}, v{OB+i}')
    a(f'v_swap_b32 v{NMA}, v{NMB}')
    a('L_k2_x0:')
    a(f'''v_mov_b32 v{OB+10}, v{OB+12}
          v_mov_b32 v{OB+11}, v{NMB}
          ds_write_b128 v{T0}, {vr(OB,4)}
          ds_write_b128 v{T0}, {vr(OB+4,4)} offset:1024
          ds_write_b128 v{T0}, {vr(OB+8,4)} offset:2048
          s_waitcnt lgkmcnt(0)
          s_barrier
          ds_read_b128 {vr(OB,4)}, v{T0+1}
          ds_read_b128 {vr(OB+4,4)}, v{T0+1} offset:1024
          ds_read_b128 {vr(OB+8,4)}, v{T0+1} offset:2048''')
    a(f'''s_lshl_b32 s35, s22, 2
          s_lshl_b32 s36, s25, 1
          s_add_u32 s35, s35, s36
          s_mul_i32 s35, s35, 18432
          s_add_u32 s35, s35, {WS_O}
          s_lshr_b32 s36, s26, 1
          s_lshl_b32 s36, s36, 10
          s_and_b32 s37, s26, 1
          s_lshl_b32 s37, s37, 9
          s_add_u32 s36, s36, s37
          s_add_u32 s36, s36, s35
          v_bfe_u32 v{T0+2}, v0, 4, 1
          v_mul_u32_u24 v{T0+2}, 18432, v{T0+2}
          v_and_b32 v{T0+3}, 15, v0
          v_lshl_add_u32 v{T0+2}, v{T0+3}, 4, v{T0+2}
          v_lshrrev_b32 v{T0+3}, 5, v0
          v_lshl_add_u32 v{T0+3}, v{T0+3}, 8, v{T0+2}
          v_cmp_gt_u32 vcc, 32, v0
          s_lshr_b32 s37, s26, 4
          s_add_u32 s37, s37, 16
          s_lshl_b32 s37, s37, 10
          v_cndmask_b32 v{T0+2}, v3, v{T0+2}, vcc
          s_bfe_u32 s38, s26, 0x20002
          s_lshl_b32 s38, s38, 8
          s_add_u32 s37, s37, s38
          s_and_b32 s38, s26, 3
          s_lshl_b32 s38, s38, 2
          s_add_u32 s37, s37, s38
          s_add_u32 s37, s37, s35
          s_waitcnt lgkmcnt(0)''')
    a(f'''v_min_f32 v{T0}, v{NMA}, v{OB+11}
          v_sub_f32 v{T0+1}, v{T0}, v{NMA}
          v_sub_f32 v{T0}, v{T0}, v{OB+11}
          v_exp_f32 v{T0+1}, v{T0+1}
          v_exp_f32 v{T0}, v{T0}
          s_nop 0
          v_mul_f32 v{T0+4}, v{T0+1}, v{OA+12}
          v_fmac_f32 v{T0+4}, v{T0}, v{OB+10}
          v_rcp_f32 v{T0+4}, v{T0+4}
          s_nop 0
          v_mul_f32 v{T0+1}, v{T0+1}, v{T0+4}
          v_mul_f32 v{T0}, v{T0}, v{T0+4}''')
    for i in range(10):
        a(f'v_mul_f32 v{OA+i}, v{OA+i}, v{T0+1}')
        a(f'v_fmac_f32 v{OA+i}, v{OB+i}, v{T0}')
    for i in range(5):
        a(f'v_cvt_pk_bf16_f32 v{S[0]+i}, v{OA+2*i}, v{OA+2*i+1}')
    a(f'''buffer_store_dwordx4 {vr(S[0],4)}, v{T0+3}, s[68:71], s36 offen
          buffer_store_dword v{S[0]+4}, v{T0+2}, s[68:71], s37 offen
          s_endpgm''')

    a('L_k2_conv:')
    AF, BF, ACC = 32, 64, 128
    aA, aB, aB0, aU, aY = 4, 5, 6, 7, 8
    DG = 12
    a(f'''s_sub_u32 s24, s3, 8
          s_lshl_b32 s24, s24, 8
          s_add_u32 s24, s24, s2
          s_cmp_ge_u32 s24, 576
          s_cbranch_scc1 L_k2_end
          s_setprio 2
          s_lshl_b32 s25, s24, 12
          s_add_u32 s72, s4, s25
          s_addc_u32 s73, s5, 0
          s_and_b32 s73, s73, 0xffff
          s_mov_b32 s74, 4096
          s_mov_b32 s75, 0x00020000
          s_mul_i32 s25, s24, {UR_CH}
          s_add_u32 s25, s25, {WS_UR}
          s_add_u32 s76, s20, s25
          s_addc_u32 s77, s21, 0
          s_and_b32 s77, s77, 0xffff
          s_mov_b32 s78, {UR_CH}
          s_mov_b32 s79, 0x00020000''')
    a.srd(80, 6, 1152)
    a(f'''v_and_b32 v1, 15, v0
          v_bfe_u32 v2, v0, 4, 1
          v_lshrrev_b32 v3, 5, v0
          v_and_b32 v9, 7, v0
          v_bfe_u32 v10, v0, 3, 1
          v_lshl_or_b32 v9, v9, 1, v10''')
    a(f'''v_lshlrev_b32 v11, 3, v2
          v_lshlrev_b32 v20, 4, v3
          v_sub_u32 v11, v11, v20
          v_sub_u32 v11, v11, v9
          v_add_u32 v11, 2047, v11
          v_lshlrev_b32 v11, 1, v11
          v_xor_b32 v20, 1, v10
          v_mul_u32_u24 v20, {UR_COPY-2}, v20
          v_add_u32 v11, v11, v20
          v_subrev_u32 v{aA}, {64*56}, v11''')
    a(f'''v_sub_u32 v11, v1, v3
          v_lshlrev_b32 v11, 5, v11
          v_lshl_add_u32 v{aB0}, v2, 4, v11
          v_add_u32 v{aB}, 512, v{aB0}''')
    a(f'''v_lshlrev_b32 v11, 5, v1
          v_lshlrev_b32 v20, 4, v2
          v_sub_u32 v11, v20, v11
          v_add_u32 v{aU}, {4064 - 512*7}, v11''')
    a(f'''v_lshl_or_b32 v11, v2, 1, v3
          v_lshlrev_b32 v11, 3, v11
          v_lshl_add_u32 v{aY}, v1, 5, v11
          s_lshl_b32 s26, s24, 12
          s_add_u32 s26, s26, {WS_Y}
          s_lshl_b32 s27, s24, 1
          v_mov_b32 v21, s27
          buffer_load_ushort v22, v21, s[80:83], 0 offen''')

    def loadA():
        for i in range(8):
            a(f'buffer_load_dwordx4 {vr(AF+4*i,4)}, v{aA}, s[76:79], 0 offen offset:{64*(56-8*i)}')

    def loadB(buf):
        a(f'buffer_load_dwordx4 {vr(BF+32*buf,4)}, v{aB0}, s[72:75], 0 offen')
        for d in range(1, 8):
            a(f'buffer_load_dwordx4 {vr(BF+32*buf+4*d,4)}, v{aB}, s[72:75], 0 offen offset:{512*(d-1)}')

    for c in range(8):
        a(f'buffer_load_dwordx4 {vr(BF+32+4*c,4)}, v{aU}, s[76:79], 0 offen offset:{512*(7-c)}')
    loadB(0)
    loadA()
    a(f'''v_lshlrev_b32 v11, 3, v2
          v_add_u32 v11, v11, v9
          v_sub_u32 v11, 15, v11
          v_lshl_add_u32 v11, v3, 4, v11
          v_and_b32 v20, 1, v11
          v_lshlrev_b32 v20, 4, v20
          v_lshrrev_b32 v11, 1, v11
          s_barrier
          s_barrier
          s_waitcnt vmcnt(24)
          v_lshlrev_b32 v22, v20, v22''')
    for d in range(4):
        a(f'''v_cmp_eq_u32 vcc, {d}, v11
              s_nop 1
              v_cndmask_b32 v{DG+d}, 0, v22, vcc''')
    a('s_waitcnt vmcnt(16)')
    a('s_nop 1')
    for c in range(8):
        a(f'v_mfma_f32_16x16x32_bf16 {vr(ACC+4*c,4)}, {vr(DG,4)}, {vr(BF+32+4*c,4)}, 0')
    a('s_mov_b32 s28, 4')
    a('L_k2_cloop:')
    for buf in range(2):
        a(f'''v_subrev_u32 v{aA}, 64, v{aA}
              v_subrev_u32 v{aB}, 64, v{aB}
              v_subrev_u32 v{aB0}, 64, v{aB0}''')
        loadB(buf ^ 1)
        a('s_waitcnt vmcnt(8)')
        for i in range(7, -1, -1):
            for d in range(0, 8 - i):
                c = i + d
                a(f'v_mfma_f32_16x16x32_bf16 {vr(ACC+4*c,4)}, {vr(AF+4*i,4)}, {vr(BF+32*buf+4*d,4)}, {vr(ACC+4*c,4)}')
            a(f'buffer_load_dwordx4 {vr(AF+4*i,4)}, v{aA}, s[76:79], 0 offen offset:{64*(56-8*i)}')
    a('''s_sub_u32 s28, s28, 1
         s_cmp_lg_u32 s28, 0
         s_cbranch_scc1 L_k2_cloop
         s_nop 7''')
    for c in range(8):
        x = ACC + 4 * c
        a(f'''v_permlane32_swap_b32 v{x}, v{x+2}
              v_permlane32_swap_b32 v{x+1}, v{x+3}
              s_nop 0
              v_cvt_pk_bf16_f32 v{x}, v{x}, v{x+2}
              v_cvt_pk_bf16_f32 v{x+1}, v{x+1}, v{x+3}
              buffer_store_dwordx2 {vr(x,2)}, v{aY}, s[68:71], s26 offen offset:{512*c}''')
    a('L_k2_end:\ns_endpgm')
    return a.text(), dict(name='k2_kernel', grid=256, block=704, lds=LDS, vgpr=160, sgpr=96)


def gen_k3():
    a = Asm()
    L_OI = 0
    L_WA = 4 * 18 * 1024
    L_WB = L_WA + 576 * 128
    L_WC = L_WB
    LDS = L_WB + 576 * 16
    L_XS = [0, 18 * 1024]
    L_YS = [36 * 1024, 54 * 1024]
    a('k3_kernel:')
    a('''s_cmp_ge_u32 s2, 256
         s_cbranch_scc1 L_k3_end
         s_load_dwordx2 s[4:5], s[0:1], 0
         s_load_dwordx2 s[6:7], s[0:1], 32
         s_load_dwordx2 s[8:9], s[0:1], 96
         s_load_dwordx2 s[20:21], s[0:1], 112
         v_lshrrev_b32 v1, 6, v0
         v_mov_b32 v5, v0
         v_and_b32 v0, 63, v0
         v_readfirstlane_b32 s3, v1
         s_and_b32 s22, s2, 7
         s_lshr_b32 s23, s2, 6
         s_lshl_b32 s23, s23, 3
         s_or_b32 s22, s22, s23
         s_lshr_b32 s23, s2, 3
         s_and_b32 s23, s23, 7
         s_and_b32 s24, s3, 3
         s_lshr_b32 s25, s3, 2
         s_mul_i32 s26, s22, 73728
         s_mul_i32 s27, s23, 144''')
    a(f'v_mov_b32 v4, {OOB}')
    XSRC, XLDS, YSRC, YLDS = [64, 65], [66, 67], [68, 69], [70, 71]
    for e in range(2):
        a(f'''v_add_u32 v10, {512*e}, v5
              v_mul_u32_u24 v11, 7282, v10
              v_lshrrev_b32 v11, 16, v11
              v_mul_u32_u24 v12, 9, v11
              v_sub_u32 v12, v10, v12
              v_lshlrev_b32 v12, 4, v12
              v_mul_u32_u24 v{XSRC[e]}, 1152, v11
              v_add3_u32 v{XSRC[e]}, v{XSRC[e]}, v12, s27
              v_lshrrev_b32 v13, 5, v11
              v_mul_u32_u24 v13, {L_XS[1]-32*144}, v13
              v_mul_u32_u24 v{XLDS[e]}, 144, v11
              v_add3_u32 v{XLDS[e]}, v{XLDS[e]}, v12, v13
              v_lshrrev_b32 v11, 3, v10
              v_and_b32 v12, 7, v10
              v_lshlrev_b32 v12, 4, v12
              v_lshl_add_u32 v{YSRC[e]}, v11, 12, v12
              v_lshl_add_u32 v{YLDS[e]}, v11, 7, v12
              v_cmp_lt_u32 vcc, 35, v11
              v_mov_b32 v13, {L_YS[0]}
              v_mov_b32 v14, {L_YS[1]-36*128}
              v_cndmask_b32 v13, v13, v14, vcc
              v_add_u32 v{YLDS[e]}, v{YLDS[e]}, v13''')
    a(f'''v_cmp_gt_u32 vcc, 64, v5
          s_nop 1
          v_cndmask_b32 v{XSRC[1]}, v4, v{XSRC[1]}, vcc
          v_cndmask_b32 v{YSRC[1]}, v4, v{YSRC[1]}, vcc
          s_mul_i32 s28, s23, {72*4096}
          s_lshl_b32 s29, s22, 7
          s_add_u32 s28, s28, s29
          s_add_u32 s28, s28, {WS_Y}''')
    a('''v_lshrrev_b32 v10, 3, v0
         v_bfe_u32 v8, v0, 4, 1
         s_and_b32 s31, s3, 1
         s_lshl_b32 s31, s31, 1
         v_or_b32 v8, s31, v8
         v_lshlrev_b32 v8, 1, v8
         v_xor_b32 v8, v8, v0
         v_and_b32 v8, 7, v8
         v_lshlrev_b32 v8, 4, v8
         v_add_u32 v8, s27, v8
         v_lshrrev_b32 v11, 2, v10
         v_and_b32 v12, 3, v10
         v_lshl_add_u32 v11, v11, 3, v12
         v_mul_u32_u24 v7, 1152, v11
         v_add_u32 v7, v7, v8
         v_lshrrev_b32 v11, 1, v10
         v_mul_u32_u24 v11, 18, v11
         v_and_b32 v12, 1, v10
         v_add3_u32 v11, v11, v12, 16
         v_mul_u32_u24 v9, 1152, v11
         v_add_u32 v9, v9, v8''')
    a('''v_lshrrev_b32 v10, 4, v0
         v_mul_u32_u24 v10, 18, v10
         v_bfe_u32 v11, v0, 3, 1
         v_lshl_add_u32 v10, v11, 2, v10
         v_bfe_u32 v11, v0, 2, 1
         v_lshl_add_u32 v10, v11, 3, v10
         v_and_b32 v11, 3, v0
         v_add_u32 v10, v10, v11
         v_mul_u32_u24 v14, 1152, v10
         v_add_u32 v14, s27, v14
         v_add_u32 v14, 128, v14
         v_lshrrev_b32 v10, 1, v0
         v_mul_u32_u24 v10, 18, v10
         v_and_b32 v11, 1, v0
         v_add3_u32 v10, v10, v11, 16
         v_mul_u32_u24 v15, 1152, v10
         v_add_u32 v15, s27, v15
         v_add_u32 v15, 128, v15
         v_lshlrev_b32 v6, 4, v0
         s_waitcnt lgkmcnt(0)''')
    a.srd(60, 4, 2359296)
    a.srd(64, 6, 663552)
    a.srd(68, 20, WS_SIZE)
    a.srd(72, 8, 2359296)
    a(f'''s_lshl_b32 s30, s22, 2
          s_add_u32 s30, s30, s24
          s_mul_i32 s30, s30, 18432
          s_add_u32 s30, s30, {WS_O}''')

    def dma(vaddr, srd, soff, lds_sgpr):
        a(f'''s_mov_b32 m0, s{lds_sgpr}
              s_nop 0
              buffer_load_dwordx4 v{vaddr}, s[{srd}:{srd+3}], s{soff} offen lds''')

    for c in range(3):
        a(f'''s_cmp_lt_u32 s3, 3
              s_cbranch_scc0 L_k3_nwb{c}
              s_add_u32 s34, s3, {3*c}
              s_mul_i32 s35, s34, {72*1152}
              s_lshl_b32 s34, s34, 10
              s_add_u32 s34, s34, {L_WB}''')
        if c == 2:
            a('''s_cmp_eq_u32 s3, 2
                 s_cbranch_scc0 L_k3_wbm
                 s_mov_b32 s35, 0''')
            dma(15, 64, 35, 34)
            a(f'''s_branch L_k3_nwb{c}
                  L_k3_wbm:''')
        dma(14, 64, 35, 34)
        a(f'L_k3_nwb{c}:')
        for e in range(3):
            a(f'''s_mul_i32 s34, s25, 3
                  s_add_u32 s34, s34, {6*c+e}
                  s_lshl_b32 s34, s34, 10
                  s_add_u32 s35, s34, s30
                  s_mul_i32 s36, s24, 18432
                  s_add_u32 s34, s34, s36''')
            dma(6, 68, 35, 34)
            base = 24 * c + 8 * e
            a(f's_add_u32 s34, s3, {base}')
            if base < 64:
                a('''s_lshr_b32 s35, s34, 1
                     s_mul_i32 s35, s35, 18
                     s_and_b32 s36, s34, 1
                     s_lshl_b32 s36, s36, 2
                     s_add_u32 s35, s35, s36
                     s_mul_i32 s35, s35, 1152''')
                va = 7
            else:
                a(f's_mul_i32 s35, s3, {72*1152}')
                va = 9
            a(f'''s_lshl_b32 s34, s34, 10
                  s_add_u32 s34, s34, {L_WA}''')
            dma(va, 64, 35, 34)
        if c == 0:
            XR, YR = [72, 76], [80, 84]
            for e in range(2):
                a(f'buffer_load_dwordx4 {vr(XR[e],4)}, v{XSRC[e]}, s[60:63], s26 offen')
                a(f'buffer_load_dwordx4 {vr(YR[e],4)}, v{YSRC[e]}, s[68:71], s28 offen')
            a(f'''s_lshl_b32 s34, s22, 8
                  s_lshl_b32 s35, s24, 6
                  s_add_u32 s34, s34, s35
                  s_add_u32 s34, s34, {WS_G}
                  v_and_b32 v10, 15, v0
                  v_lshlrev_b32 v10, 2, v10
                  buffer_load_dword v88, v10, s[68:71], s34 offen''')
    R = dict(aB=16, aA=[17, 18, 19], B=[20, 24], A=[28, 40], acc=52)
    gemm_addr_setup(a, R, L_WA, L_WB, L_WC, 0, 10, 11, 12, 25)
    a(f'''s_mul_i32 s34, s24, 18432
          v_add_u32 v{R["aB"]}, s34, v6''')
    a(f'''v_and_b32 v10, 15, v0
          v_mul_u32_u24 v89, 144, v10
          v_lshrrev_b32 v11, 4, v0
          v_lshl_add_u32 v89, v11, 3, v89
          s_lshr_b32 s34, s24, 1
          s_mul_i32 s34, s34, {L_XS[1]}
          s_and_b32 s35, s24, 1
          s_mul_i32 s35, s35, {16*144}
          s_add_u32 s34, s34, s35
          s_mul_i32 s35, s25, 96
          s_add_u32 s34, s34, s35
          v_add_u32 v89, s34, v89
          v_lshrrev_b32 v10, 2, v0
          s_mul_i32 s35, s25, 48
          v_add_u32 v10, s35, v10
          v_and_b32 v11, 3, v0
          v_lshlrev_b32 v11, 3, v11
          s_lshl_b32 s34, s24, 5
          v_add_u32 v11, s34, v11''')
    for x in range(3):
        a(f'''v_add_u32 v12, {16*x}, v10
              v_min_u32 v12, 71, v12
              v_lshl_add_u32 v{90+x}, v12, 7, v11
              v_cmp_lt_u32 vcc, 35, v12
              v_mov_b32 v13, {L_YS[0]}
              v_mov_b32 v14, {L_YS[1]-36*128}
              v_cndmask_b32 v13, v13, v14, vcc
              v_add_u32 v{90+x}, v{90+x}, v13''')
    a('''s_cmp_eq_u32 s25, 1
         s_cbranch_scc1 L_k3_g1''')
    for ng in range(2):
        if ng == 1:
            a('L_k3_g1:')

        def bi_off(ks):
            return ks * 1024
        a('s_waitcnt vmcnt(17)\ns_barrier')
        gemm_chunk(a, ng, 0, R, bi_off)
        a('s_waitcnt vmcnt(6)\ns_barrier')
        a(f'''ds_write_b128 v{XLDS[0]}, {vr(XR[0],4)}
              ds_write_b128 v{YLDS[0]}, {vr(YR[0],4)}''')
        if ng == 0:
            a(f'''s_cmp_eq_u32 s3, 0
                  s_cbranch_scc0 L_k3_ns
                  ds_write_b128 v{XLDS[1]}, {vr(XR[1],4)}
                  ds_write_b128 v{YLDS[1]}, {vr(YR[1],4)}
                  L_k3_ns:''')
        a('s_waitcnt lgkmcnt(0)')
        gemm_chunk(a, ng, 1, R, bi_off)
        a('s_waitcnt vmcnt(0)\ns_barrier')
        ntile = 3 if ng == 0 else 2
        gemm_chunk(a, ng, 2, R, bi_off)
        for x in range(ntile):
            a(f'ds_read_b64 {vr(72+2*x,2)}, v89 offset:{32*x}')
            a(f'ds_read_b64_tr_b16 {vr(80+2*x,2)}, v{90+x}')
        a('v_sub_f32 v87, 1.0, v88')
        a('s_waitcnt lgkmcnt(0)')
        for x in range(ntile):
            acc = R['acc'] + 4 * x
            for r in range(4):
                xs, ys = 72 + 2 * x + (r >> 1), 80 + 2 * x + (r >> 1)
                if r & 1:
                    a(f'v_and_b32 v20, 0xffff0000, v{xs}')
                    a(f'v_and_b32 v21, 0xffff0000, v{ys}')
                else:
                    a(f'v_lshlrev_b32 v20, 16, v{xs}')
                    a(f'v_lshlrev_b32 v21, 16, v{ys}')
                a(f'''v_mul_f32 v20, v20, v21
                      v_mul_f32 v20, v20, v87
                      v_fma_f32 v{24+r}, v88, v{acc+r}, v20''')
            a(f'''v_cvt_pk_bf16_f32 v{28+2*x}, v24, v25
                  v_cvt_pk_bf16_f32 v{29+2*x}, v26, v27''')
            if ng == 1 and x == 1:
                a(f'''v_cmp_gt_u32 vcc, 32, v0
                      s_and_saveexec_b64 s[36:37], vcc
                      ds_write_b64 v89, {vr(28+2*x,2)} offset:{32*x}
                      s_mov_b64 exec, s[36:37]''')
            else:
                a(f'ds_write_b64 v89, {vr(28+2*x,2)} offset:{32*x}')
        a('s_waitcnt lgkmcnt(0)\ns_barrier')
        a(f'ds_read_b128 {vr(72,4)}, v{XLDS[0]}')
        if ng == 0:
            a(f'''s_cmp_eq_u32 s3, 0
                  s_cbranch_scc0 L_k3_ns2
                  ds_read_b128 {vr(76,4)}, v{XLDS[1]}
                  s_waitcnt lgkmcnt(0)
                  buffer_store_dwordx4 {vr(76,4)}, v{XSRC[1]}, s[72:75], s26 offen
                  L_k3_ns2:''')
        a(f'''s_waitcnt lgkmcnt(0)
              buffer_store_dwordx4 {vr(72,4)}, v{XSRC[0]}, s[72:75], s26 offen
              s_endpgm''')
    a('L_k3_end:\ns_endpgm')
    return a.text(), dict(name='k3_kernel', grid=256, block=512, lds=LDS, vgpr=96, sgpr=96)


def main(out_path):
    ref = open(os.path.join(os.path.dirname(__file__), '..', 'cdna_kernels', NAME + '.s.ref')).read()
    head = [l for l in ref.split('\n') if l.startswith(';') and '@launch' not in l and 'Override launch' not in l
            and 'grid=ceil' not in l]
    kernels = [gen_k1(), gen_k2(), gen_k3()]
    s = '\n'.join(head) + '\n'
    for _, k in kernels:
        s += f"; @launch kernel={k['name']} grid=({k['grid']},1,1) block=({k['block']},1,1) lds={k['lds']}\n"
    s += '.amdgcn_target "amdgcn-amd-amdhsa--gfx950"\n.text\n'
    for t, k in kernels:
        s += f".globl {k['name']}\n.p2align 8\n.type {k['name']},@function\n" + t
    s += '.section .rodata,"a"\n'
    for _, k in kernels:
        s += f'''.p2align 6
.amdhsa_kernel {k['name']}
  .amdhsa_next_free_vgpr {k['vgpr']}
  .amdhsa_next_free_sgpr {k['sgpr']}
  .amdhsa_accum_offset {k['vgpr']}
  .amdhsa_group_segment_fixed_size 0
  .amdhsa_kernarg_size 120
  .amdhsa_user_sgpr_count 2
  .amdhsa_user_sgpr_kernarg_segment_ptr 1
  .amdhsa_system_sgpr_workgroup_id_x 1
.end_amdhsa_kernel
'''
    open(out_path, 'w').write(s)


if __name__ == '__main__':
    main(sys.argv[1] if len(sys.argv) > 1 else os.path.join(os.path.dirname(__file__), '..', 'cdna_kernels', NAME + '.s'))
```

```python
import math, sys, os

NAME = "gated_mix__grouped_kv_mqa__ssm_conv_h3__prompt"

WS_KV = 0
TILE_B = 2336
KV_BYTES = 64 * TILE_B
WS_Q = 0x40000
WS_G = 0x280000
WS_UR = 0x290000
UR_COPY = 4128
UR_CH = 8256
WS_O = 0x720000
WS_Y = 0x960000
WS_SIZE = 0x1000000
OOB = 0x7FFFFF00

WS_DBG = 0xC00000
STAMPS = int(os.environ.get('STAMPS', '0'))
QSCALE = (18 ** -0.5) * math.log2(math.e)


def f32bits(x):
    import struct
    return struct.unpack('<I', struct.pack('<f', x))[0]


class Asm:
    def __init__(self):
        self.lines = []

    def __call__(self, s):
        for ln in s.split('\n'):
            ln = ln.strip()
            if ln:
                self.lines.append(('    ' + ln) if not ln.endswith(':') else ln)

    def c(self, s):
        self.lines.append('    ; ' + s)

    def srd(self, d, b, nbytes):
        self(f'''s_mov_b32 s{d}, s{b}
                 s_and_b32 s{d+1}, s{b+1}, 0xffff
                 s_mov_b32 s{d+2}, {nbytes}
                 s_mov_b32 s{d+3}, 0x00020000''')

    def stamp(self, i, real=False):
        if not STAMPS:
            return
        op = 's_memrealtime' if real else 's_memtime'
        self(f'''s_waitcnt lgkmcnt(0)
                 {op} s[{84+2*i}:{85+2*i}]
                 s_waitcnt lgkmcnt(0)''')

    def stamp_out(self, kidx, nw):
        if not STAMPS:
            return
        self(f'''s_lshl_b32 s82, s2, 4
                 s_add_u32 s82, s82, s3
                 s_lshl_b32 s82, s82, 5
                 s_add_u32 s82, s82, {WS_DBG + kidx*256*16*32}
                 v_mov_b32 v8, s84
                 v_mov_b32 v9, s86
                 v_mov_b32 v10, s88
                 v_mov_b32 v11, s90
                 v_mov_b32 v12, s92
                 v_mov_b32 v13, s94
                 v_mov_b32 v14, s96
                 v_mov_b32 v15, s98
                 v_mov_b32 v7, 0
                 buffer_store_dwordx4 v[8:11], v7, s[68:71], s82 offen
                 buffer_store_dwordx4 v[12:15], v7, s[68:71], s82 offen offset:16''')

    def text(self):
        return '\n'.join(self.lines) + '\n'


def vr(a, n):
    return f'v[{a}:{a+n-1}]' if n > 1 else f'v{a}'


def gemm_chunk(a, ng, c, R, bi_off, last_alias=None):
    tiles = [0, 1, 2] if ng == 0 else [3, 4]
    nrd = 1 + 2 * len(tiles)

    def reads(ks, buf):
        a(f'ds_read_b128 {vr(R["B"][buf], 4)}, v{R["aB"]} offset:{bi_off(ks)}')
        for x, nt in enumerate(tiles):
            d = R['A'][buf] + 4 * x
            if nt < 4:
                off = (ks - 6 * c) * 4096
                a(f'ds_read_b64_tr_b16 {vr(d, 2)}, v{R["aA"][x]} offset:{off}')
                a(f'ds_read_b64_tr_b16 {vr(d+2, 2)}, v{R["aA"][x]} offset:{off+512}')
            else:
                off = ks * 512
                a(f'ds_read_b64_tr_b16 {vr(d, 2)}, v{R["aA"][x]} offset:{off}')
                a(f'ds_read_b64_tr_b16 {vr(d+2, 2)}, v{R["aA"][x]} offset:{off+64}')

    kss = list(range(6 * c, 6 * c + 6))
    reads(kss[0], 0)
    for i, ks in enumerate(kss):
        buf = i & 1
        if i + 1 < 6:
            if last_alias is not None and kss[i + 1] == 17:
                a('s_waitcnt vmcnt(0)')
            reads(kss[i + 1], buf ^ 1)
            a(f's_waitcnt lgkmcnt({nrd})')
        else:
            a('s_waitcnt lgkmcnt(0)')
        for x, nt in enumerate(tiles):
            acc = R['acc'] + 4 * x
            cin = '0' if ks == 0 else vr(acc, 4)
            a(f'v_mfma_f32_16x16x32_bf16 {vr(acc,4)}, {vr(R["A"][buf]+4*x,4)}, {vr(R["B"][buf],4)}, {cin}')
    if c < 2:
        for x, nt in enumerate(tiles):
            if nt < 4:
                a(f'v_add_u32 v{R["aA"][x]}, {6*4096}, v{R["aA"][x]}')


def gemm_addr_setup(a, R, L_WA, L_WB, L_WC, vlane, t0, t1, t2, s_ng):
    a(f'''v_lshrrev_b32 v{t0}, 4, v{vlane}
          v_lshlrev_b32 v{t0}, 3, v{t0}
          v_bfe_u32 v{t1}, v{vlane}, 2, 2
          v_add_u32 v{t0}, v{t0}, v{t1}''')
    a(f'''v_bfe_u32 v{t1}, v{vlane}, 3, 1
          v_bfe_u32 v{t2}, v{vlane}, 4, 1
          v_lshl_or_b32 v{t1}, v{t2}, 1, v{t1}''')
    a(f'''v_and_b32 v{t2}, 3, v{vlane}
          v_lshlrev_b32 v{t2}, 3, v{t2}
          v_lshl_add_u32 v{t2}, v{t0}, 7, v{t2}
          v_add_u32 v{t2}, {L_WA}, v{t2}''')
    a(f's_mul_i32 s40, s{s_ng}, 3')
    a(f'''v_xor_b32 v{R["aA"][0]}, s40, v{t1}
          v_lshl_add_u32 v{R["aA"][0]}, v{R["aA"][0]}, 5, v{t2}
          v_xor_b32 v{R["aA"][1]}, 1, v{t1}
          v_lshl_add_u32 v{R["aA"][1]}, v{R["aA"][1]}, 5, v{t2}
          v_xor_b32 v{R["aA"][2]}, 2, v{t1}
          v_lshl_add_u32 v{R["aA"][2]}, v{R["aA"][2]}, 5, v{t2}''')
    a(f'''v_and_b32 v{t1}, 1, v{vlane}
          v_lshlrev_b32 v{t1}, 3, v{t1}
          v_lshl_add_u32 v{t1}, v{t0}, 4, v{t1}
          v_bfe_u32 v{t2}, v{vlane}, 1, 1
          v_mul_u32_u24 v{t2}, {L_WC-L_WB}, v{t2}
          v_add3_u32 v{t1}, v{t1}, v{t2}, v{t2}
          v_sub_u32 v{t1}, v{t1}, v{t2}
          v_add_u32 v{t1}, {L_WB}, v{t1}
          s_cmp_eq_u32 s{s_ng}, 1
          s_cselect_b64 vcc, -1, 0
          v_cndmask_b32 v{R["aA"][1]}, v{R["aA"][1]}, v{t1}, vcc''')


def gen_k1():
    a = Asm()
    L_XI = 0
    L_WA = 4 * 17 * 1024
    L_WB = L_WA + 576 * 128
    L_WC = L_WB + 576 * 16 + 64
    LDS = L_WC + 576 * 16
    a('k1_kernel:')
    a.stamp(0); a.stamp(5, True)
    a('''s_cmp_ge_u32 s2, 256
         s_cbranch_scc1 L_k1_exit
         s_load_dwordx4 s[4:7], s[0:1], 0
         s_load_dwordx4 s[8:11], s[0:1], 16
         s_load_dwordx4 s[12:15], s[0:1], 48
         s_load_dwordx2 s[16:17], s[0:1], 64
         s_load_dwordx2 s[18:19], s[0:1], 88
         s_load_dwordx2 s[20:21], s[0:1], 112
         v_lshrrev_b32 v1, 6, v0
         v_and_b32 v0, 63, v0
         v_readfirstlane_b32 s3, v1
         s_and_b32 s22, s2, 7
         s_lshr_b32 s23, s2, 6
         s_lshl_b32 s23, s23, 3
         s_or_b32 s22, s22, s23
         s_lshr_b32 s23, s2, 3
         s_and_b32 s23, s23, 7''')
    a('''s_and_b32 s24, s3, 3
         s_lshr_b32 s25, s3, 2
         s_mul_i32 s26, s22, 73728
         s_mul_i32 s27, s23, 144''')
    a(f'''s_mul_i32 s28, s3, 9216
          s_add_u32 s28, s28, s26
          s_add_u32 s28, s28, s27
          v_lshlrev_b32 v2, 2, v0
          v_add_u32 v2, s28, v2
          v_cmp_gt_u32 vcc, 36, v0
          v_mov_b32 v4, {OOB}
          s_nop 0
          v_cndmask_b32 v2, v4, v2, vcc
          v_subrev_u32 v3, 4608, v2
          s_mul_i32 s29, s23, 576
          v_lshlrev_b32 v5, 4, v0
          v_add_u32 v5, s29, v5
          v_cndmask_b32 v5, v4, v5, vcc''')
    for j in range(1, 8):
        a(f's_mov_b32 s{40+j}, {1152*j}')
    a('s_waitcnt lgkmcnt(0)')
    a.srd(48, 12, 2359296)
    a.srd(52, 14, 2359296)
    a.srd(56, 16, 4608)
    a.srd(60, 4, 2359296)
    a.srd(64, 6, 663552)
    a.srd(68, 20, WS_SIZE)
    a('''s_cmp_lt_u32 s23, 3
         s_cselect_b32 s72, s8, s10
         s_cselect_b32 s73, s9, s11
         s_and_b32 s73, s73, 0xffff
         s_mov_b32 s74, 20736
         s_mov_b32 s75, 0x00020000''')
    a.srd(76, 18, 1152)
    KK, VV, SK = 64, 76, 88
    a(f'''s_mul_i32 s34, s3, 72
          v_add_u32 v92, s34, v0
          v_lshlrev_b32 v93, 1, v92
          buffer_load_ushort v94, v93, s[76:79], 0 offen
          buffer_load_ushort v95, v93, s[76:79], 0 offen offset:16
          v_lshlrev_b32 v92, 4, v92
          v_add_u32 v92, {L_WC}, v92''')
    a(f'buffer_load_dwordx4 v[{SK}:{SK+3}], v5, s[56:59], 0 offen')
    for j in range(4):
        so = '0' if j == 0 else f's{40+j}'
        a(f'buffer_load_dword v{KK+j}, v3, s[48:51], {so} offen')
    for j in range(8):
        so = '0' if j == 0 else f's{40+j}'
        a(f'buffer_load_dword v{KK+4+j}, v2, s[48:51], {so} offen')
    a(f'buffer_load_dword v{VV}, v3, s[52:55], s43 offen')
    for j in range(8):
        so = '0' if j == 0 else f's{40+j}'
        a(f'buffer_load_dword v{VV+1+j}, v2, s[52:55], {so} offen')
    a('''v_lshrrev_b32 v6, 2, v0
         v_lshrrev_b32 v7, 4, v0
         v_sub_u32 v7, 0, v7
         v_xor_b32 v7, v7, v0
         v_and_b32 v7, 3, v7
         v_lshlrev_b32 v7, 4, v7
         v_mul_u32_u24 v6, 1152, v6
         v_add_u32 v6, v6, v7
         s_mul_i32 s30, s24, 18432
         s_add_u32 s30, s30, s26''')
    a('''v_lshrrev_b32 v7, 3, v0
         v_bfe_u32 v8, v0, 4, 1
         s_and_b32 s31, s3, 1
         s_lshl_b32 s31, s31, 1
         v_or_b32 v8, s31, v8
         v_lshlrev_b32 v8, 1, v8
         v_xor_b32 v8, v8, v0
         v_and_b32 v8, 7, v8
         v_lshlrev_b32 v8, 4, v8
         v_mul_u32_u24 v7, 1152, v7
         v_add3_u32 v7, v7, v8, s27''')
    a('''v_mul_u32_u24 v8, 1152, v0
         v_add_u32 v8, s27, v8
         v_add_u32 v8, 128, v8
         s_mov_b32 s32, s23
         s_cmp_ge_u32 s23, 3
         s_cselect_b32 s33, 3, 0
         s_sub_u32 s32, s32, s33
         s_lshl_b32 s33, s32, 4
         s_cmp_eq_u32 s32, 2
         s_cselect_b32 s33, 20, s33
         v_mul_u32_u24 v9, 36, v0
         v_add_u32 v9, s33, v9''')

    def dma(vaddr, srd, soff, lds_expr_sgpr):
        a(f'''s_mov_b32 m0, s{lds_expr_sgpr}
              s_nop 0
              buffer_load_dwordx4 v{vaddr}, s[{srd}:{srd+3}], s{soff} offen lds''')

    for c in range(3):
        a(f'''s_cmp_lt_u32 s3, 3
              s_cbranch_scc0 L_k1_nwb{c}
              s_add_u32 s34, s3, {3*c}
              s_mul_i32 s35, s34, 73728
              s_lshl_b32 s34, s34, 10
              s_add_u32 s34, s34, {L_WB}''')
        dma(8, 64, 35, 34)
        a(f'''s_branch L_k1_nwc{c}
              L_k1_nwb{c}:
              s_cmp_lt_u32 s3, 6
              s_cbranch_scc0 L_k1_nwc{c}
              s_cmp_lt_u32 s23, 6
              s_cbranch_scc0 L_k1_nwc{c}
              s_add_u32 s34, s3, {3*c-3}
              s_mul_i32 s35, s34, 2304
              s_lshl_b32 s34, s34, 10
              s_add_u32 s34, s34, {L_WC}''')
        dma(9, 72, 35, 34)
        a(f'L_k1_nwc{c}:')
        for e in range(3):
            a(f'''s_mul_i32 s34, s25, 3
                  s_add_u32 s34, s34, {6*c+e}''')
            if c == 2 and e == 2:
                a('s_mov_b32 s34, 14')
            a(f'''s_lshl_b32 s35, s34, 6
                  s_add_u32 s35, s35, s30
                  s_mul_i32 s36, s24, 17
                  s_add_u32 s34, s34, s36
                  s_lshl_b32 s34, s34, 10''')
            dma(6, 60, 35, 34)
            a(f'''s_add_u32 s34, s3, {24*c+8*e}
                  s_mul_i32 s35, s34, 9216
                  s_lshl_b32 s34, s34, 10
                  s_add_u32 s34, s34, {L_WA}''')
            dma(7, 64, 35, 34)
    R = dict(aB=16, aA=[17, 18, 19], B=[20, 24], A=[28, 40], acc=52)
    gemm_addr_setup(a, R, L_WA, L_WB, L_WC, 0, 10, 11, 12, 25)
    a(f'''v_and_b32 v10, 15, v0
          v_lshrrev_b32 v11, 2, v10
          v_sub_u32 v11, 0, v11
          v_lshrrev_b32 v12, 4, v0
          v_xor_b32 v11, v11, v12
          v_and_b32 v11, 3, v11
          v_lshlrev_b32 v11, 4, v11
          v_lshl_add_u32 v{R["aB"]}, v10, 6, v11
          s_mul_i32 s34, s24, {17*1024}
          v_add_u32 v{R["aB"]}, s34, v{R["aB"]}''')
    QA = 96
    a(f'''s_and_b32 s34, s24, 1
          s_lshl_b32 s34, s34, 4
          v_add_u32 v13, s34, v10
          s_lshl_b32 s37, s22, 1
          s_lshr_b32 s34, s24, 1
          s_add_u32 s37, s37, s34
          s_lshl_b32 s37, s37, 5
          s_lshl_b32 s34, s23, 2
          s_add_u32 s37, s37, s34
          s_mul_i32 s37, s37, 1152
          s_add_u32 s37, s37, {WS_Q}
          s_mul_i32 s38, s25, 48
          v_lshlrev_b32 v12, 2, v12''')
    for x in range(3):
        for pr in range(2):
            d = QA + 2 * x + pr
            a(f'''v_add_u32 v10, s38, v12
                  v_add_u32 v10, {16*x+2*pr}, v10
                  v_mul_u32_u24 v11, 3641, v10
                  v_lshrrev_b32 v11, 16, v11
                  v_mul_u32_u24 v14, 18, v11
                  v_sub_u32 v14, v10, v14
                  v_mul_u32_u24 v11, 1152, v11
                  v_lshrrev_b32 v15, 3, v14
                  v_lshl_add_u32 v15, v15, 5, v13
                  v_lshlrev_b32 v15, 4, v15
                  v_and_b32 v{d}, 7, v14
                  v_lshl_add_u32 v15, v{d}, 1, v15
                  v_lshlrev_b32 v{d}, 2, v13
                  v_add_u32 v{d}, 1024, v{d}
                  v_cmp_gt_u32 vcc, 16, v14
                  s_nop 1
                  v_cndmask_b32 v{d}, v{d}, v15, vcc
                  v_add3_u32 v{d}, v{d}, v11, s37
                  v_cmp_gt_u32 vcc, 72, v10
                  s_nop 1
                  v_cndmask_b32 v{d}, v4, v{d}, vcc''')
    a('s_waitcnt vmcnt(18)')
    a.stamp(1)
    a('''s_cmp_eq_u32 s23, 6
         s_cbranch_scc0 L_k1_nogate
         ds_write_b16 v92, v94
         ds_write_b16 v92, v95 offset:128
         L_k1_nogate:''')
    LO, HI = 104, 128
    for j in range(21):
        a(f'v_lshlrev_b32 v{LO+j}, 16, v{KK+j}')
        a(f'v_and_b32 v{HI+j}, 0xffff0000, v{KK+j}')
    S = 152
    for d in range(4):
        a(f'v_lshlrev_b32 v{S+2*d}, 16, v{SK+d}')
        a(f'v_and_b32 v{S+2*d+1}, 0xffff0000, v{SK+d}')
    U = 64
    for ch, base in ((0, LO), (1, HI)):
        for tau in range(9):
            u = U + 9 * ch + tau
            a(f'v_mul_f32 v{u}, v{S+4*ch}, v{base+tau+3}')
            for i in range(1, 4):
                a(f'v_fmac_f32 v{u}, v{S+4*ch+i}, v{base+tau+3-i}')
            a(f'v_mul_f32 v{u}, v{u}, v{base+12+tau}')
    P = 104
    for ch in range(2):
        u = U + 9 * ch
        for d in range(4):
            a(f'v_cvt_pk_bf16_f32 v{P+8*ch+d}, v{u+8-2*d}, v{u+7-2*d}')
            a(f'v_cvt_pk_bf16_f32 v{P+8*ch+4+d}, v{u+7-2*d}, v{u+6-2*d}')
    a(f'''s_mul_i32 s34, s23, {72*UR_CH}
          s_lshl_b32 s35, s22, 7
          s_lshl_b32 s36, s3, 4
          s_add_u32 s35, s35, s36
          s_sub_u32 s34, s34, s35
          s_add_u32 s34, s34, {WS_UR + 4080}
          v_mul_u32_u24 v10, {2*UR_CH}, v0
          v_add_u32 v10, s34, v10
          v_cmp_gt_u32 vcc, 36, v0
          s_mov_b32 s35, {UR_COPY}
          s_mov_b32 s36, {UR_CH}
          v_cndmask_b32 v10, v4, v10, vcc
          s_mov_b32 s39, {UR_CH+UR_COPY}
          buffer_store_dwordx4 v[{P}:{P+3}], v10, s[68:71], 0 offen
          buffer_store_dwordx4 v[{P+4}:{P+7}], v10, s[68:71], s35 offen
          buffer_store_dwordx4 v[{P+8}:{P+11}], v10, s[68:71], s36 offen
          buffer_store_dwordx4 v[{P+12}:{P+15}], v10, s[68:71], s39 offen''')
    a('''s_cmp_eq_u32 s25, 1
         s_cbranch_scc1 L_k1_g1''')
    for ng in range(2):
        if ng == 1:
            a('L_k1_g1:')

        def bi_off(ks, ng=ng):
            return (ks if ks < 17 else ng) * 1024
        a('s_waitcnt vmcnt(16) lgkmcnt(0)\ns_barrier')
        a.stamp(2)
        gemm_chunk(a, ng, 0, R, bi_off)
        a('s_waitcnt vmcnt(10)\ns_barrier')
        a(f'''s_add_u32 s35, s30, {17*64}
              s_mul_i32 s34, s24, {17*1024}
              s_add_u32 s34, s34, {ng*1024}''')
        dma(6, 60, 35, 34)
        gemm_chunk(a, ng, 1, R, bi_off)
        a('s_waitcnt vmcnt(5)\ns_barrier')
        a.stamp(3)
        gemm_chunk(a, ng, 2, R, bi_off, last_alias=True)
        a('s_nop 7')
        a.stamp(4)
        ntile = 3 if ng == 0 else 2
        a(f's_mov_b32 s34, {f32bits(QSCALE)}')
        for x in range(ntile):
            acc = R['acc'] + 4 * x
            for r in range(4):
                a(f'v_mul_f32 v{20+4*x+r}, s34, v{acc+r}')
            a(f'v_cvt_pk_bf16_f32 v{32+2*x}, v{20+4*x}, v{21+4*x}')
            a(f'v_cvt_pk_bf16_f32 v{33+2*x}, v{22+4*x}, v{23+4*x}')
            a(f'buffer_store_dword v{32+2*x}, v{QA+2*x}, s[68:71], 0 offen')
            a(f'buffer_store_dword v{33+2*x}, v{QA+2*x+1}, s[68:71], 0 offen')
        if ng == 0:
            a(f'''s_cmp_eq_u32 s22, 0
                  s_cbranch_scc0 L_k1_nopad
                  s_cmp_eq_u32 s3, 0
                  s_cbranch_scc0 L_k1_nopad
                  v_mov_b32 v40, 0
                  v_mov_b32 v41, 0
                  v_mov_b32 v42, 0
                  v_mov_b32 v43, 0
                  buffer_store_dwordx4 v[40:43], v10, s[68:71], 0 offen offset:16
                  buffer_store_dwordx4 v[40:43], v10, s[68:71], 0 offen offset:32
                  buffer_store_dwordx4 v[40:43], v10, s[68:71], s36 offen offset:16
                  buffer_store_dwordx4 v[40:43], v10, s[68:71], s36 offen offset:32
                  s_mov_b32 s35, {UR_COPY}
                  buffer_store_dwordx4 v[40:43], v10, s[68:71], s35 offen offset:16
                  buffer_store_dwordx4 v[40:43], v10, s[68:71], s35 offen offset:32
                  buffer_store_dwordx4 v[40:43], v10, s[68:71], s39 offen offset:16
                  buffer_store_dwordx4 v[40:43], v10, s[68:71], s39 offen offset:32
                  L_k1_nopad:
                  s_cmp_eq_u32 s23, 7
                  s_cbranch_scc0 L_k1_end
                  s_cmp_eq_u32 s3, 1
                  s_cbranch_scc0 L_k1_end''')
            a(f'''v_lshrrev_b32 v10, 1, v0
                  v_mul_u32_u24 v10, {TILE_B}, v10
                  v_and_b32 v11, 1, v0
                  v_mul_u32_u24 v11, 592, v11
                  s_mul_i32 s34, s22, {2*TILE_B}
                  s_add_u32 s34, s34, {WS_KV + 1152 + 576}
                  v_add3_u32 v10, v10, v11, s34
                  v_cmp_gt_u32 vcc, 4, v0
                  v_mov_b32 v40, 0x3f803f80
                  v_mov_b32 v41, 0x3f803f80
                  v_cndmask_b32 v10, v4, v10, vcc
                  v_mov_b32 v42, 0x3f803f80
                  v_mov_b32 v43, 0x3f803f80
                  buffer_store_dwordx4 v[40:43], v10, s[68:71], 0 offen
                  s_branch L_k1_end''')
        else:
            E = R['acc'] + 4
            a(f'''s_lshl_b32 s34, s22, 1
                  s_lshr_b32 s35, s24, 1
                  s_add_u32 s34, s34, s35
                  s_mul_i32 s34, s34, {TILE_B}
                  s_add_u32 s34, s34, {WS_KV}
                  v_bfe_u32 v11, v0, 4, 1
                  v_cvt_pk_bf16_f32 v40, v{E}, v{E+1}
                  v_cvt_pk_bf16_f32 v41, v{E+2}, v{E+3}
                  s_cmp_lt_u32 s23, 2
                  s_cbranch_scc0 L_k1_e2''')
            a(f'''s_lshl_b32 s35, s23, 9
                  s_add_u32 s34, s34, s35
                  v_lshlrev_b32 v10, 4, v13
                  v_lshl_add_u32 v10, v11, 3, v10
                  v_add_u32 v10, s34, v10
                  v_cmp_lt_u32 vcc, 31, v0
                  s_nop 1
                  v_cndmask_b32 v10, v4, v10, vcc
                  buffer_store_dwordx2 v[40:41], v10, s[68:71], 0 offen
                  s_branch L_k1_end
                  L_k1_e2:
                  s_cmp_eq_u32 s23, 2
                  s_cbranch_scc0 L_k1_e3''')
            a(f'''v_lshlrev_b32 v10, 2, v13
                  v_add_u32 v10, s34, v10
                  v_cmp_lt_u32 vcc, 47, v0
                  s_nop 1
                  v_cndmask_b32 v10, v4, v10, vcc
                  buffer_store_dword v41, v10, s[68:71], 0 offen offset:1024
                  s_branch L_k1_end
                  L_k1_e3:
                  s_cmp_lt_u32 s23, 6
                  s_cbranch_scc0 L_k1_e6''')
            a(f'''s_sub_u32 s35, s23, 3
                  s_lshl_b32 s35, s35, 7
                  s_cmp_eq_u32 s23, 5
                  s_cselect_b32 s35, 160, s35
                  s_cselect_b32 s36, 47, 31
                  s_add_u32 s34, s34, s35
                  s_and_b32 s35, s24, 1
                  s_mul_i32 s35, s35, 592
                  s_add_u32 s34, s34, s35
                  v_bfe_u32 v10, v0, 3, 1
                  v_mul_u32_u24 v10, 288, v10
                  v_lshl_add_u32 v10, v11, 6, v10
                  v_and_b32 v11, 7, v0
                  v_lshl_add_u32 v10, v11, 1, v10
                  v_add_u32 v10, s34, v10
                  v_cmp_lt_u32 vcc, s36, v0
                  s_nop 1
                  v_cndmask_b32 v10, v4, v10, vcc
                  buffer_store_short v41, v10, s[68:71], 0 offen offset:{1152+32}
                  buffer_store_short_d16_hi v41, v10, s[68:71], 0 offen offset:{1152+48}
                  s_cmp_eq_u32 s23, 5
                  s_cbranch_scc1 L_k1_end
                  buffer_store_short v40, v10, s[68:71], 0 offen offset:{1152}
                  buffer_store_short_d16_hi v40, v10, s[68:71], 0 offen offset:{1152+16}
                  s_branch L_k1_end
                  L_k1_e6:
                  s_cmp_eq_u32 s23, 6
                  s_cbranch_scc0 L_k1_end''')
            a(f'''v_mul_f32 v40, {f32bits(-math.log2(math.e))}, v{E}
                  v_exp_f32 v40, v40
                  s_lshl_b32 s34, s22, 8
                  s_lshl_b32 s35, s24, 6
                  v_add_f32 v40, 1.0, v40
                  v_rcp_f32 v40, v40
                  s_add_u32 s34, s34, s35
                  s_add_u32 s34, s34, {WS_G}
                  v_and_b32 v10, 15, v0
                  v_lshlrev_b32 v10, 2, v10
                  v_add_u32 v10, s34, v10
                  v_lshrrev_b32 v11, 4, v0
                  v_cmp_eq_u32 vcc, 2, v11
                  s_nop 1
                  v_cndmask_b32 v10, v4, v10, vcc
                  buffer_store_dword v40, v10, s[68:71], 0 offen''')
    a('L_k1_end:')
    if STAMPS: a('s_waitcnt vmcnt(0)')
    a.stamp(7); a.stamp(6, True); a.stamp_out(0, 8)
    a('L_k1_exit:\ns_endpgm')
    return a.text(), dict(name='k1_kernel', grid=256, block=512, lds=LDS, vgpr=160, sgpr=102)


def gen_k2():
    a = Asm()
    LDS = KV_BYTES + 4096
    a('k2_kernel:')
    a.stamp(0); a.stamp(5, True)
    a('''s_cmp_ge_u32 s2, 256
         s_cbranch_scc1 L_k2_end
         s_load_dwordx4 s[4:7], s[0:1], 72
         s_load_dwordx2 s[20:21], s[0:1], 112
         v_lshrrev_b32 v1, 6, v0
         v_and_b32 v0, 63, v0
         v_readfirstlane_b32 s3, v1
         s_and_b32 s22, s2, 7
         s_lshr_b32 s23, s2, 6
         s_lshl_b32 s23, s23, 3
         s_or_b32 s22, s22, s23
         s_lshr_b32 s23, s2, 3
         s_and_b32 s23, s23, 7
         s_waitcnt lgkmcnt(0)''')
    a.srd(68, 20, WS_SIZE)
    a(f'''s_cmp_ge_u32 s3, 8
          s_cbranch_scc1 L_k2_conv''')
    QA1, QA2, QB1, QB2 = 4, 8, 12, 10
    K1 = [16, 20]
    K2 = [24, 26]
    VA, VB = 28, 32
    IDX, aK1, aK2, aV = 36, 37, 38, 39
    NMA, NMB = 40, 41
    T0 = 42
    S = [48, 64, 80, 96]
    OA, OB = 112, 128
    a(f'''s_and_b32 s24, s3, 3
          s_lshr_b32 s25, s3, 2
          s_lshl_b32 s26, s23, 2
          s_add_u32 s26, s26, s24
          s_lshl_b32 s27, s22, 6
          s_add_u32 s27, s27, s26
          s_mul_i32 s27, s27, 1152
          s_add_u32 s27, s27, {WS_Q}
          s_add_u32 s28, s27, {32*1152}
          v_lshlrev_b32 v1, 4, v0
          v_lshlrev_b32 v2, 2, v0
          v_mov_b32 v3, {OOB}
          v_cmp_gt_u32 vcc, 32, v0
          s_nop 1
          v_cndmask_b32 v2, v3, v2, vcc
          buffer_load_dwordx4 {vr(QA1,4)}, v1, s[68:71], s27 offen
          buffer_load_dword v{QA2}, v2, s[68:71], s27 offen offset:1024
          buffer_load_dwordx4 {vr(QB1,4)}, v1, s[68:71], s28 offen
          buffer_load_dword v{QB2}, v2, s[68:71], s28 offen offset:1024''')

    def piece(expr_add):
        a(f'''s_add_u32 s30, s29, {expr_add*1024}
              s_mov_b32 m0, s30
              s_nop 0
              buffer_load_dwordx4 v1, s[68:71], s30 offen lds''')
    a('s_lshl_b32 s29, s3, 10')
    piece(0)
    piece(73)
    for i in range(8):
        piece(8 + 8 * i)
        piece(81 + 8 * i)
    a('''s_cmp_eq_u32 s3, 0
         s_cbranch_scc0 L_k2_nx''')
    piece(72)
    piece(145)
    a('L_k2_nx:')
    a(f'''v_mov_b32 v{IDX}, 0xdddd
          v_mov_b32 v{K2[0]+1}, 0x3f80
          v_mov_b32 v{K2[1]+1}, 0x3f80
          v_mov_b32 v{QA2+1}, 0
          v_mov_b32 v{QB2+1}, 0
          s_mul_i32 s31, s25, {32*TILE_B}
          v_add_u32 v{aK1}, s31, v1
          v_and_b32 v{T0}, 31, v0
          v_lshlrev_b32 v{aK2}, 2, v{T0}
          v_add_u32 v{aK2}, s31, v{aK2}
          v_lshrrev_b32 v{T0+1}, 5, v0
          v_mul_u32_u24 v{T0+1}, 288, v{T0+1}
          v_lshl_add_u32 v{T0+1}, v{T0}, 4, v{T0+1}
          v_mov_b32 v{T0+2}, 576
          v_cmp_gt_u32 vcc, 18, v{T0}
          s_nop 1
          v_cndmask_b32 v{aV}, v{T0+2}, v{T0+1}, vcc
          v_add_u32 v{aV}, s31, v{aV}
          s_mov_b32 s33, 0
          s_mov_b32 s34, 0
          s_waitcnt vmcnt(16)
          s_barrier''')
    a.stamp(1)

    def qk1(dst, kb, q1):
        a(f'v_mfma_f32_32x32x16_bf16 {vr(dst,16)}, {vr(K1[kb],4)}, {vr(q1,4)}, 0')

    def qk2(dst, kb, q2):
        a(f'v_mfma_f32_32x32x8_bf16 {vr(dst,16)}, {vr(K2[kb],2)}, {vr(q2,2)}, {vr(dst,16)}')

    def pv(o, v, p):
        a(f'v_smfmac_f32_32x32x32_bf16 {vr(o,16)}, {vr(v,4)}, {vr(p,8)}, v{IDX}')

    def rdK(kb, tile):
        a(f'ds_read_b128 {vr(K1[kb],4)}, v{aK1} offset:{tile*TILE_B}')
        a(f'ds_read_b32 v{K2[kb]}, v{aK2} offset:{tile*TILE_B+1024}')

    def rdV(reg, tile, half):
        a(f'ds_read_b128 {vr(reg,4)}, v{aV} offset:{tile*TILE_B+1152+592*half}')

    def maxtree(dst, s, init=None):
        if init is None:
            a(f'v_max3_f32 v{dst}, v{s}, v{s+1}, v{s+2}')
            rest = list(range(3, 16))
        else:
            rest = list(range(0, 16))
        while len(rest) >= 2:
            a(f'v_max3_f32 v{dst}, v{dst}, v{s+rest[0]}, v{s+rest[1]}')
            rest = rest[2:]
        if rest:
            a(f'v_max_f32 v{dst}, v{dst}, v{s+rest[0]}')

    def set_bias():
        for nm, q2, t in ((NMA, QA2, T0), (NMB, QB2, T0 + 1)):
            a(f'v_mov_b32 v{t}, v{nm}')
        a('s_nop 1')
        for nm, q2, t in ((NMA, QA2, T0), (NMB, QB2, T0 + 1)):
            a(f'v_permlane32_swap_b32 v{nm}, v{t}')
        a('v_cmp_gt_u32 vcc, 32, v0')
        for nm, q2, t in ((NMA, QA2, T0), (NMB, QB2, T0 + 1)):
            a(f'''v_max_f32 v{nm}, v{nm}, v{t}
                  v_cvt_pk_bf16_f32 v{t}, -v{nm}, 0
                  v_lshlrev_b32 v{nm}, 16, v{t}
                  v_cndmask_b32 v{q2+1}, 0, v{t}, vcc''')

    rdK(0, 0)
    a('s_waitcnt lgkmcnt(0)')
    qk1(S[0], 0, QA1); qk2(S[0], 0, QA2)
    qk1(S[1], 0, QB1); qk2(S[1], 0, QB2)
    a('s_nop 11')
    maxtree(NMA, S[0])
    maxtree(NMB, S[1])
    set_bias()
    a('L_k2_restart:')
    a.stamp(2)
    rdK(0, 0)
    rdK(1, 1)
    rdV(VA, 0, 0)
    for i in range(16):
        a(f'v_mov_b32 v{OA+i}, 0')
        a(f'v_mov_b32 v{OB+i}, 0')
    for i in range(8, 16):
        a(f'v_mov_b32 v{S[3]+i}, 0')
    for i in range(4):
        a(f'v_mov_b32 v{VB+i}, 0')
    a('s_waitcnt lgkmcnt(3)')
    qk1(S[0], 0, QA1); qk2(S[0], 0, QA2)
    a('s_mov_b32 s32, 16')
    a('s_nop 10')
    a('.p2align 6')
    a('L_k2_loop:')

    def exps(buf, lo):
        for i in range(lo, lo + 4):
            a(f'v_exp_f32 v{S[buf]+i}, v{S[buf]+i}')

    for tl in range(2):
        kb = tl & 1
        cur, nxt, prv = 2 * tl, 2 * tl + 1, (2 * tl + 3) % 4
        qk1(S[nxt], kb, QB1)
        exps(cur, 0)
        qk2(S[nxt], kb, QB2)
        exps(cur, 4)
        pv(OB, VB, S[prv] + 8)
        rdV(VB, tl, 1)
        exps(cur, 8)
        a('s_waitcnt lgkmcnt(1)')
        pv(OA, VA, S[cur])
        exps(cur, 12)
        cur, nxt, prv = 2 * tl + 1, (2 * tl + 2) % 4, 2 * tl
        qk1(S[nxt], kb ^ 1, QA1)
        exps(cur, 0)
        qk2(S[nxt], kb ^ 1, QA2)
        rdK(kb, tl + 2)
        exps(cur, 4)
        a('s_waitcnt lgkmcnt(2)')
        pv(OA, VB, S[prv] + 8)
        exps(cur, 8)
        pv(OB, VA, S[cur])
        rdV(VA, tl + 1, 0)
        exps(cur, 12)
    a(f'''v_add_u32 v{aK1}, {2*TILE_B}, v{aK1}
          v_add_u32 v{aK2}, {2*TILE_B}, v{aK2}
          v_add_u32 v{aV}, {2*TILE_B}, v{aV}
          s_cmp_eq_u32 s33, 0
          s_cbranch_scc0 L_k2_nobar
          s_mov_b32 s33, 1
          s_waitcnt vmcnt(0)
          s_barrier
          L_k2_nobar:
          s_sub_u32 s32, s32, 1
          s_cmp_lg_u32 s32, 0
          s_cbranch_scc1 L_k2_loop''')
    pv(OB, VB, S[3] + 8)
    a(f'''v_subrev_u32 v{aK1}, {32*TILE_B}, v{aK1}
          v_subrev_u32 v{aK2}, {32*TILE_B}, v{aK2}
          v_subrev_u32 v{aV}, {32*TILE_B}, v{aV}
          s_waitcnt lgkmcnt(0)
          s_nop 9''')
    a(f'''s_cmp_eq_u32 s34, 0
          s_cbranch_scc0 L_k2_ok
          v_add_f32 v{T0}, |v{OA}|, |v{OB}|''')
    for i in range(1, 10):
        a(f'v_add_f32 v{T0}, v{T0}, |v{OA+i}|')
        a(f'v_add_f32 v{T0}, v{T0}, |v{OB+i}|')
    a(f'''v_mov_b32 v{T0+2}, 0x7e800000
          v_cmp_nlt_f32 vcc, v{T0}, v{T0+2}
          v_mov_b32 v{T0+2}, 0x4f800000
          v_cmp_nlt_f32 s[36:37], v{OA+12}, v{T0+2}
          v_cmp_nlt_f32 s[38:39], v{OB+12}, v{T0+2}
          s_or_b64 vcc, vcc, s[36:37]
          s_or_b64 vcc, vcc, s[38:39]
          s_cbranch_vccz L_k2_ok''')
    a(f'''s_mov_b32 s34, 1
          v_mov_b32 v{QA2+1}, 0
          v_mov_b32 v{QB2+1}, 0
          v_mov_b32 v{NMA}, 0xff800000
          v_mov_b32 v{NMB}, 0xff800000
          s_mov_b32 s32, 32
          L_k2_mloop:''')
    rdK(0, 0)
    a(f'''v_add_u32 v{aK1}, {TILE_B}, v{aK1}
          v_add_u32 v{aK2}, {TILE_B}, v{aK2}
          s_waitcnt lgkmcnt(0)''')
    qk1(S[0], 0, QA1); qk2(S[0], 0, QA2)
    qk1(S[1], 0, QB1); qk2(S[1], 0, QB2)
    a('s_nop 11')
    maxtree(NMA, S[0], init=True)
    maxtree(NMB, S[1], init=True)
    a(f'''s_sub_u32 s32, s32, 1
          s_cmp_lg_u32 s32, 0
          s_cbranch_scc1 L_k2_mloop
          v_subrev_u32 v{aK1}, {32*TILE_B}, v{aK1}
          v_subrev_u32 v{aK2}, {32*TILE_B}, v{aK2}''')
    set_bias()
    a('s_branch L_k2_restart')
    a('L_k2_ok:')
    a.stamp(3)
    a('s_barrier')
    a.stamp(4)
    a(f'''s_mul_i32 s35, s3, 3072
          s_xor_b32 s36, s3, 4
          s_mul_i32 s36, s36, 3072
          v_add_u32 v{T0}, s35, v1
          v_add_u32 v{T0+1}, s36, v1
          s_cmp_eq_u32 s25, 0
          s_cbranch_scc1 L_k2_x0''')
    for i in list(range(10)) + [12]:
        a(f'v_swap_b32 v{OA+i}, v{OB+i}')
    a(f'v_swap_b32 v{NMA}, v{NMB}')
    a('L_k2_x0:')
    a(f'''v_mov_b32 v{OB+10}, v{OB+12}
          v_mov_b32 v{OB+11}, v{NMB}
          ds_write_b128 v{T0}, {vr(OB,4)}
          ds_write_b128 v{T0}, {vr(OB+4,4)} offset:1024
          ds_write_b128 v{T0}, {vr(OB+8,4)} offset:2048
          s_waitcnt lgkmcnt(0)
          s_barrier
          ds_read_b128 {vr(OB,4)}, v{T0+1}
          ds_read_b128 {vr(OB+4,4)}, v{T0+1} offset:1024
          ds_read_b128 {vr(OB+8,4)}, v{T0+1} offset:2048''')
    a(f'''s_lshl_b32 s35, s22, 2
          s_lshl_b32 s36, s25, 1
          s_add_u32 s35, s35, s36
          s_mul_i32 s35, s35, 18432
          s_add_u32 s35, s35, {WS_O}
          s_lshr_b32 s36, s26, 1
          s_lshl_b32 s36, s36, 10
          s_and_b32 s37, s26, 1
          s_lshl_b32 s37, s37, 9
          s_add_u32 s36, s36, s37
          s_add_u32 s36, s36, s35
          v_bfe_u32 v{T0+2}, v0, 4, 1
          v_mul_u32_u24 v{T0+2}, 18432, v{T0+2}
          v_and_b32 v{T0+3}, 15, v0
          v_lshl_add_u32 v{T0+2}, v{T0+3}, 4, v{T0+2}
          v_lshrrev_b32 v{T0+3}, 5, v0
          v_lshl_add_u32 v{T0+3}, v{T0+3}, 8, v{T0+2}
          v_cmp_gt_u32 vcc, 32, v0
          s_lshr_b32 s37, s26, 4
          s_add_u32 s37, s37, 16
          s_lshl_b32 s37, s37, 10
          v_cndmask_b32 v{T0+2}, v3, v{T0+2}, vcc
          s_bfe_u32 s38, s26, 0x20002
          s_lshl_b32 s38, s38, 8
          s_add_u32 s37, s37, s38
          s_and_b32 s38, s26, 3
          s_lshl_b32 s38, s38, 2
          s_add_u32 s37, s37, s38
          s_add_u32 s37, s37, s35
          s_waitcnt lgkmcnt(0)''')
    a(f'''v_min_f32 v{T0}, v{NMA}, v{OB+11}
          v_sub_f32 v{T0+1}, v{T0}, v{NMA}
          v_sub_f32 v{T0}, v{T0}, v{OB+11}
          v_exp_f32 v{T0+1}, v{T0+1}
          v_exp_f32 v{T0}, v{T0}
          s_nop 0
          v_mul_f32 v{T0+4}, v{T0+1}, v{OA+12}
          v_fmac_f32 v{T0+4}, v{T0}, v{OB+10}
          v_rcp_f32 v{T0+4}, v{T0+4}
          s_nop 0
          v_mul_f32 v{T0+1}, v{T0+1}, v{T0+4}
          v_mul_f32 v{T0}, v{T0}, v{T0+4}''')
    for i in range(10):
        a(f'v_mul_f32 v{OA+i}, v{OA+i}, v{T0+1}')
        a(f'v_fmac_f32 v{OA+i}, v{OB+i}, v{T0}')
    for i in range(5):
        a(f'v_cvt_pk_bf16_f32 v{S[0]+i}, v{OA+2*i}, v{OA+2*i+1}')
    a(f'''buffer_store_dwordx4 {vr(S[0],4)}, v{T0+3}, s[68:71], s36 offen
          buffer_store_dword v{S[0]+4}, v{T0+2}, s[68:71], s37 offen''')
    if STAMPS: a('s_waitcnt vmcnt(0)')
    a.stamp(7); a.stamp(6, True); a.stamp_out(1, 11)
    a('s_endpgm')

    a('L_k2_conv:')
    AF, BF, ACC = 32, 64, 128
    aA, aB, aB0, aU, aY = 4, 5, 6, 7, 8
    DG = 12
    a(f'''s_sub_u32 s24, s3, 8
          s_lshl_b32 s24, s24, 8
          s_add_u32 s24, s24, s2
          s_cmp_ge_u32 s24, {0 if os.environ.get('NOCONV') else 576}
          s_cbranch_scc1 L_k2_end
          s_setprio 2
          s_lshl_b32 s25, s24, 12
          s_add_u32 s72, s4, s25
          s_addc_u32 s73, s5, 0
          s_and_b32 s73, s73, 0xffff
          s_mov_b32 s74, 4096
          s_mov_b32 s75, 0x00020000
          s_mul_i32 s25, s24, {UR_CH}
          s_add_u32 s25, s25, {WS_UR}
          s_add_u32 s76, s20, s25
          s_addc_u32 s77, s21, 0
          s_and_b32 s77, s77, 0xffff
          s_mov_b32 s78, {UR_CH}
          s_mov_b32 s79, 0x00020000''')
    a.srd(80, 6, 1152)
    a(f'''v_and_b32 v1, 15, v0
          v_bfe_u32 v2, v0, 4, 1
          v_lshrrev_b32 v3, 5, v0
          v_and_b32 v9, 7, v0
          v_bfe_u32 v10, v0, 3, 1
          v_lshl_or_b32 v9, v9, 1, v10''')
    a(f'''v_lshlrev_b32 v11, 3, v2
          v_lshlrev_b32 v20, 4, v3
          v_sub_u32 v11, v11, v20
          v_sub_u32 v11, v11, v9
          v_add_u32 v11, 2047, v11
          v_lshlrev_b32 v11, 1, v11
          v_xor_b32 v20, 1, v10
          v_mul_u32_u24 v20, {UR_COPY-2}, v20
          v_add_u32 v11, v11, v20
          v_subrev_u32 v{aA}, {64*56}, v11''')
    a(f'''v_sub_u32 v11, v1, v3
          v_lshlrev_b32 v11, 5, v11
          v_lshl_add_u32 v{aB0}, v2, 4, v11
          v_add_u32 v{aB}, 512, v{aB0}''')
    a(f'''v_lshlrev_b32 v11, 5, v1
          v_lshlrev_b32 v20, 4, v2
          v_sub_u32 v11, v20, v11
          v_add_u32 v{aU}, {4064 - 512*7}, v11''')
    a(f'''v_lshl_or_b32 v11, v2, 1, v3
          v_lshlrev_b32 v11, 3, v11
          v_lshl_add_u32 v{aY}, v1, 5, v11
          s_lshl_b32 s26, s24, 12
          s_add_u32 s26, s26, {WS_Y}
          s_lshl_b32 s27, s24, 1
          v_mov_b32 v21, s27
          buffer_load_ushort v22, v21, s[80:83], 0 offen''')

    def loadA():
        for i in range(8):
            a(f'buffer_load_dwordx4 {vr(AF+4*i,4)}, v{aA}, s[76:79], 0 offen offset:{64*(56-8*i)}')

    def loadB(buf):
        a(f'buffer_load_dwordx4 {vr(BF+32*buf,4)}, v{aB0}, s[72:75], 0 offen')
        for d in range(1, 8):
            a(f'buffer_load_dwordx4 {vr(BF+32*buf+4*d,4)}, v{aB}, s[72:75], 0 offen offset:{512*(d-1)}')

    for c in range(8):
        a(f'buffer_load_dwordx4 {vr(BF+32+4*c,4)}, v{aU}, s[76:79], 0 offen offset:{512*(7-c)}')
    loadB(0)
    loadA()
    a(f'''v_lshlrev_b32 v11, 3, v2
          v_add_u32 v11, v11, v9
          v_sub_u32 v11, 15, v11
          v_lshl_add_u32 v11, v3, 4, v11
          v_and_b32 v20, 1, v11
          v_lshlrev_b32 v20, 4, v20
          v_lshrrev_b32 v11, 1, v11
          s_barrier
          s_barrier
          s_waitcnt vmcnt(24)
          v_lshlrev_b32 v22, v20, v22''')
    for d in range(4):
        a(f'''v_cmp_eq_u32 vcc, {d}, v11
              s_nop 1
              v_cndmask_b32 v{DG+d}, 0, v22, vcc''')
    a('s_waitcnt vmcnt(16)')
    a('s_nop 1')
    for c in range(8):
        a(f'v_mfma_f32_16x16x32_bf16 {vr(ACC+4*c,4)}, {vr(DG,4)}, {vr(BF+32+4*c,4)}, 0')
    a('s_mov_b32 s28, 4')
    a.stamp(2)
    a('L_k2_cloop:')
    for buf in range(2):
        a(f'''v_subrev_u32 v{aA}, 64, v{aA}
              v_subrev_u32 v{aB}, 64, v{aB}
              v_subrev_u32 v{aB0}, 64, v{aB0}''')
        loadB(buf ^ 1)
        a('s_waitcnt vmcnt(8)')
        for i in range(7, -1, -1):
            for d in range(0, 8 - i):
                c = i + d
                a(f'v_mfma_f32_16x16x32_bf16 {vr(ACC+4*c,4)}, {vr(AF+4*i,4)}, {vr(BF+32*buf+4*d,4)}, {vr(ACC+4*c,4)}')
            a(f'buffer_load_dwordx4 {vr(AF+4*i,4)}, v{aA}, s[76:79], 0 offen offset:{64*(56-8*i)}')
    a('''s_sub_u32 s28, s28, 1
         s_cmp_lg_u32 s28, 0
         s_cbranch_scc1 L_k2_cloop
         s_nop 7''')
    a.stamp(3)
    for c in range(8):
        x = ACC + 4 * c
        a(f'''v_permlane32_swap_b32 v{x}, v{x+2}
              v_permlane32_swap_b32 v{x+1}, v{x+3}
              s_nop 0
              v_cvt_pk_bf16_f32 v{x}, v{x}, v{x+2}
              v_cvt_pk_bf16_f32 v{x+1}, v{x+1}, v{x+3}
              buffer_store_dwordx2 {vr(x,2)}, v{aY}, s[68:71], s26 offen offset:{512*c}''')
    if STAMPS: a('s_waitcnt vmcnt(0)')
    a.stamp(7); a.stamp(6, True); a.stamp_out(1, 11)
    a('L_k2_end:\ns_endpgm')
    return a.text(), dict(name='k2_kernel', grid=256, block=704, lds=LDS, vgpr=160, sgpr=102)


def gen_k3():
    a = Asm()
    L_OI = 0
    L_WA = 4 * 18 * 1024
    L_WB = L_WA + 576 * 128
    L_WC = L_WB
    LDS = L_WB + 576 * 16
    L_XS = [0, 18 * 1024]
    L_YS = [36 * 1024, 54 * 1024]
    a('k3_kernel:')
    a.stamp(0); a.stamp(5, True)
    a('''s_cmp_ge_u32 s2, 256
         s_cbranch_scc1 L_k3_end
         s_load_dwordx2 s[4:5], s[0:1], 0
         s_load_dwordx2 s[6:7], s[0:1], 32
         s_load_dwordx2 s[8:9], s[0:1], 96
         s_load_dwordx2 s[20:21], s[0:1], 112
         v_lshrrev_b32 v1, 6, v0
         v_mov_b32 v5, v0
         v_and_b32 v0, 63, v0
         v_readfirstlane_b32 s3, v1
         s_and_b32 s22, s2, 7
         s_lshr_b32 s23, s2, 6
         s_lshl_b32 s23, s23, 3
         s_or_b32 s22, s22, s23
         s_lshr_b32 s23, s2, 3
         s_and_b32 s23, s23, 7
         s_and_b32 s24, s3, 3
         s_lshr_b32 s25, s3, 2
         s_mul_i32 s26, s22, 73728
         s_mul_i32 s27, s23, 144''')
    a(f'v_mov_b32 v4, {OOB}')
    XSRC, XLDS, YSRC, YLDS = [64, 65], [66, 67], [68, 69], [70, 71]
    for e in range(2):
        a(f'''v_add_u32 v10, {512*e}, v5
              v_mul_u32_u24 v11, 7282, v10
              v_lshrrev_b32 v11, 16, v11
              v_mul_u32_u24 v12, 9, v11
              v_sub_u32 v12, v10, v12
              v_lshlrev_b32 v12, 4, v12
              v_mul_u32_u24 v{XSRC[e]}, 1152, v11
              v_add3_u32 v{XSRC[e]}, v{XSRC[e]}, v12, s27
              v_lshrrev_b32 v13, 5, v11
              v_mul_u32_u24 v13, {L_XS[1]-32*144}, v13
              v_mul_u32_u24 v{XLDS[e]}, 144, v11
              v_add3_u32 v{XLDS[e]}, v{XLDS[e]}, v12, v13
              v_lshrrev_b32 v11, 3, v10
              v_and_b32 v12, 7, v10
              v_lshlrev_b32 v12, 4, v12
              v_lshl_add_u32 v{YSRC[e]}, v11, 12, v12
              v_lshl_add_u32 v{YLDS[e]}, v11, 7, v12
              v_cmp_lt_u32 vcc, 35, v11
              v_mov_b32 v13, {L_YS[0]}
              v_mov_b32 v14, {L_YS[1]-36*128}
              v_cndmask_b32 v13, v13, v14, vcc
              v_add_u32 v{YLDS[e]}, v{YLDS[e]}, v13''')
    a(f'''v_cmp_gt_u32 vcc, 64, v5
          s_nop 1
          v_cndmask_b32 v{XSRC[1]}, v4, v{XSRC[1]}, vcc
          v_cndmask_b32 v{YSRC[1]}, v4, v{YSRC[1]}, vcc
          s_mul_i32 s28, s23, {72*4096}
          s_lshl_b32 s29, s22, 7
          s_add_u32 s28, s28, s29
          s_add_u32 s28, s28, {WS_Y}''')
    a('''v_lshrrev_b32 v10, 3, v0
         v_bfe_u32 v8, v0, 4, 1
         s_and_b32 s31, s3, 1
         s_lshl_b32 s31, s31, 1
         v_or_b32 v8, s31, v8
         v_lshlrev_b32 v8, 1, v8
         v_xor_b32 v8, v8, v0
         v_and_b32 v8, 7, v8
         v_lshlrev_b32 v8, 4, v8
         v_add_u32 v8, s27, v8
         v_lshrrev_b32 v11, 2, v10
         v_and_b32 v12, 3, v10
         v_lshl_add_u32 v11, v11, 3, v12
         v_mul_u32_u24 v7, 1152, v11
         v_add_u32 v7, v7, v8
         v_lshrrev_b32 v11, 1, v10
         v_mul_u32_u24 v11, 18, v11
         v_and_b32 v12, 1, v10
         v_add3_u32 v11, v11, v12, 16
         v_mul_u32_u24 v9, 1152, v11
         v_add_u32 v9, v9, v8''')
    a('''v_lshrrev_b32 v10, 4, v0
         v_mul_u32_u24 v10, 18, v10
         v_bfe_u32 v11, v0, 3, 1
         v_lshl_add_u32 v10, v11, 2, v10
         v_bfe_u32 v11, v0, 2, 1
         v_lshl_add_u32 v10, v11, 3, v10
         v_and_b32 v11, 3, v0
         v_add_u32 v10, v10, v11
         v_mul_u32_u24 v14, 1152, v10
         v_add_u32 v14, s27, v14
         v_add_u32 v14, 128, v14
         v_lshrrev_b32 v10, 1, v0
         v_mul_u32_u24 v10, 18, v10
         v_and_b32 v11, 1, v0
         v_add3_u32 v10, v10, v11, 16
         v_mul_u32_u24 v15, 1152, v10
         v_add_u32 v15, s27, v15
         v_add_u32 v15, 128, v15
         v_lshlrev_b32 v6, 4, v0
         s_waitcnt lgkmcnt(0)''')
    a.srd(60, 4, 2359296)
    a.srd(64, 6, 663552)
    a.srd(68, 20, WS_SIZE)
    a.srd(72, 8, 2359296)
    a(f'''s_lshl_b32 s30, s22, 2
          s_add_u32 s30, s30, s24
          s_mul_i32 s30, s30, 18432
          s_add_u32 s30, s30, {WS_O}''')

    def dma(vaddr, srd, soff, lds_sgpr):
        a(f'''s_mov_b32 m0, s{lds_sgpr}
              s_nop 0
              buffer_load_dwordx4 v{vaddr}, s[{srd}:{srd+3}], s{soff} offen lds''')

    for c in range(3):
        a(f'''s_cmp_lt_u32 s3, 3
              s_cbranch_scc0 L_k3_nwb{c}
              s_add_u32 s34, s3, {3*c}
              s_mul_i32 s35, s34, {72*1152}
              s_lshl_b32 s34, s34, 10
              s_add_u32 s34, s34, {L_WB}''')
        if c == 2:
            a('''s_cmp_eq_u32 s3, 2
                 s_cbranch_scc0 L_k3_wbm
                 s_mov_b32 s35, 0''')
            dma(15, 64, 35, 34)
            a(f'''s_branch L_k3_nwb{c}
                  L_k3_wbm:''')
        dma(14, 64, 35, 34)
        a(f'L_k3_nwb{c}:')
        for e in range(3):
            a(f'''s_mul_i32 s34, s25, 3
                  s_add_u32 s34, s34, {6*c+e}
                  s_lshl_b32 s34, s34, 10
                  s_add_u32 s35, s34, s30
                  s_mul_i32 s36, s24, 18432
                  s_add_u32 s34, s34, s36''')
            dma(6, 68, 35, 34)
            base = 24 * c + 8 * e
            a(f's_add_u32 s34, s3, {base}')
            if base < 64:
                a('''s_lshr_b32 s35, s34, 1
                     s_mul_i32 s35, s35, 18
                     s_and_b32 s36, s34, 1
                     s_lshl_b32 s36, s36, 2
                     s_add_u32 s35, s35, s36
                     s_mul_i32 s35, s35, 1152''')
                va = 7
            else:
                a(f's_mul_i32 s35, s3, {72*1152}')
                va = 9
            a(f'''s_lshl_b32 s34, s34, 10
                  s_add_u32 s34, s34, {L_WA}''')
            dma(va, 64, 35, 34)
        if c == 0:
            XR, YR = [72, 76], [80, 84]
            for e in range(2):
                a(f'buffer_load_dwordx4 {vr(XR[e],4)}, v{XSRC[e]}, s[60:63], s26 offen')
                a(f'buffer_load_dwordx4 {vr(YR[e],4)}, v{YSRC[e]}, s[68:71], s28 offen')
            a(f'''s_lshl_b32 s34, s22, 8
                  s_lshl_b32 s35, s24, 6
                  s_add_u32 s34, s34, s35
                  s_add_u32 s34, s34, {WS_G}
                  v_and_b32 v10, 15, v0
                  v_lshlrev_b32 v10, 2, v10
                  buffer_load_dword v88, v10, s[68:71], s34 offen''')
    R = dict(aB=16, aA=[17, 18, 19], B=[20, 24], A=[28, 40], acc=52)
    gemm_addr_setup(a, R, L_WA, L_WB, L_WC, 0, 10, 11, 12, 25)
    a(f'''s_mul_i32 s34, s24, 18432
          v_add_u32 v{R["aB"]}, s34, v6''')
    a(f'''v_and_b32 v10, 15, v0
          v_mul_u32_u24 v89, 144, v10
          v_lshrrev_b32 v11, 4, v0
          v_lshl_add_u32 v89, v11, 3, v89
          s_lshr_b32 s34, s24, 1
          s_mul_i32 s34, s34, {L_XS[1]}
          s_and_b32 s35, s24, 1
          s_mul_i32 s35, s35, {16*144}
          s_add_u32 s34, s34, s35
          s_mul_i32 s35, s25, 96
          s_add_u32 s34, s34, s35
          v_add_u32 v89, s34, v89
          v_lshrrev_b32 v10, 2, v0
          s_mul_i32 s35, s25, 48
          v_add_u32 v10, s35, v10
          v_and_b32 v11, 3, v0
          v_lshlrev_b32 v11, 3, v11
          s_lshl_b32 s34, s24, 5
          v_add_u32 v11, s34, v11''')
    for x in range(3):
        a(f'''v_add_u32 v12, {16*x}, v10
              v_min_u32 v12, 71, v12
              v_lshl_add_u32 v{90+x}, v12, 7, v11
              v_cmp_lt_u32 vcc, 35, v12
              v_mov_b32 v13, {L_YS[0]}
              v_mov_b32 v14, {L_YS[1]-36*128}
              v_cndmask_b32 v13, v13, v14, vcc
              v_add_u32 v{90+x}, v{90+x}, v13''')
    a('''s_cmp_eq_u32 s25, 1
         s_cbranch_scc1 L_k3_g1''')
    for ng in range(2):
        if ng == 1:
            a('L_k3_g1:')

        def bi_off(ks):
            return ks * 1024
        a.stamp(1)
        a('s_waitcnt vmcnt(17)\ns_barrier')
        a.stamp(2)
        gemm_chunk(a, ng, 0, R, bi_off)
        a('s_waitcnt vmcnt(6)\ns_barrier')
        a(f'''ds_write_b128 v{XLDS[0]}, {vr(XR[0],4)}
              ds_write_b128 v{YLDS[0]}, {vr(YR[0],4)}''')
        if ng == 0:
            a(f'''s_cmp_eq_u32 s3, 0
                  s_cbranch_scc0 L_k3_ns
                  ds_write_b128 v{XLDS[1]}, {vr(XR[1],4)}
                  ds_write_b128 v{YLDS[1]}, {vr(YR[1],4)}
                  L_k3_ns:''')
        a('s_waitcnt lgkmcnt(0)')
        gemm_chunk(a, ng, 1, R, bi_off)
        a('s_waitcnt vmcnt(0)\ns_barrier')
        a.stamp(3)
        ntile = 3 if ng == 0 else 2
        gemm_chunk(a, ng, 2, R, bi_off)
        for x in range(ntile):
            a(f'ds_read_b64 {vr(72+2*x,2)}, v89 offset:{32*x}')
            a(f'ds_read_b64_tr_b16 {vr(80+2*x,2)}, v{90+x}')
        a('v_sub_f32 v87, 1.0, v88')
        a('s_waitcnt lgkmcnt(0)')
        for x in range(ntile):
            acc = R['acc'] + 4 * x
            for r in range(4):
                xs, ys = 72 + 2 * x + (r >> 1), 80 + 2 * x + (r >> 1)
                if r & 1:
                    a(f'v_and_b32 v20, 0xffff0000, v{xs}')
                    a(f'v_and_b32 v21, 0xffff0000, v{ys}')
                else:
                    a(f'v_lshlrev_b32 v20, 16, v{xs}')
                    a(f'v_lshlrev_b32 v21, 16, v{ys}')
                a(f'''v_mul_f32 v20, v20, v21
                      v_mul_f32 v20, v20, v87
                      v_fma_f32 v{24+r}, v88, v{acc+r}, v20''')
            a(f'''v_cvt_pk_bf16_f32 v{28+2*x}, v24, v25
                  v_cvt_pk_bf16_f32 v{29+2*x}, v26, v27''')
            if ng == 1 and x == 1:
                a(f'''v_cmp_gt_u32 vcc, 32, v0
                      s_and_saveexec_b64 s[36:37], vcc
                      ds_write_b64 v89, {vr(28+2*x,2)} offset:{32*x}
                      s_mov_b64 exec, s[36:37]''')
            else:
                a(f'ds_write_b64 v89, {vr(28+2*x,2)} offset:{32*x}')
        a('s_waitcnt lgkmcnt(0)\ns_barrier')
        a.stamp(4)
        a(f'ds_read_b128 {vr(72,4)}, v{XLDS[0]}')
        if ng == 0:
            a(f'''s_cmp_eq_u32 s3, 0
                  s_cbranch_scc0 L_k3_ns2
                  ds_read_b128 {vr(76,4)}, v{XLDS[1]}
                  s_waitcnt lgkmcnt(0)
                  buffer_store_dwordx4 {vr(76,4)}, v{XSRC[1]}, s[72:75], s26 offen
                  L_k3_ns2:''')
        a(f'''s_waitcnt lgkmcnt(0)
              buffer_store_dwordx4 {vr(72,4)}, v{XSRC[0]}, s[72:75], s26 offen''')
        if STAMPS: a('s_waitcnt vmcnt(0)')
        a.stamp(7); a.stamp(6, True); a.stamp_out(2, 8)
        a('s_endpgm')
    a('L_k3_end:\ns_endpgm')
    return a.text(), dict(name='k3_kernel', grid=256, block=512, lds=LDS, vgpr=96, sgpr=102)


def main(out_path):
    ref = open(os.path.join(os.path.dirname(__file__), '..', 'cdna_kernels', NAME + '.s.ref')).read()
    head = [l for l in ref.split('\n') if l.startswith(';') and '@launch' not in l and 'Override launch' not in l
            and 'grid=ceil' not in l]
    kernels = [gen_k1(), gen_k2(), gen_k3()]
    s = '\n'.join(head) + '\n'
    for _, k in kernels:
        s += f"; @launch kernel={k['name']} grid=({k['grid']},1,1) block=({k['block']},1,1) lds={k['lds']}\n"
    s += '.amdgcn_target "amdgcn-amd-amdhsa--gfx950"\n.text\n'
    for t, k in kernels:
        s += f".globl {k['name']}\n.p2align 8\n.type {k['name']},@function\n" + t
    s += '.section .rodata,"a"\n'
    for _, k in kernels:
        s += f'''.p2align 6
.amdhsa_kernel {k['name']}
  .amdhsa_next_free_vgpr {k['vgpr']}
  .amdhsa_next_free_sgpr {k['sgpr']}
  .amdhsa_accum_offset {k['vgpr']}
  .amdhsa_group_segment_fixed_size 0
  .amdhsa_kernarg_size 120
  .amdhsa_user_sgpr_count 2
  .amdhsa_user_sgpr_kernarg_segment_ptr 1
  .amdhsa_system_sgpr_workgroup_id_x 1
.end_amdhsa_kernel
'''
    open(out_path, 'w').write(s)


if __name__ == '__main__':
    main(sys.argv[1] if len(sys.argv) > 1 else os.path.join(os.path.dirname(__file__), '..', 'cdna_kernels', NAME + '.s'))
```

```python
import math, sys, os, struct

NAME = "gated_mix__grouped_kv_mqa__ssm_conv_h3__prompt"

WS_KV = 0
TILE_B = 2336
KV_BYTES = 64 * TILE_B
WS_FL = 0x30000
WS_G = 0x280000
WS_UR = 0x290000
UR_COPY = 4128
UR_CH = 8256
WS_O = 0x720000
WS_Y = 0x960000
WS_WO = 0x40000
WS_DBG = 0xC00000
WS_SIZE = 0x1000000
OOB = 0x7FFFFF00
SPIN = 20000
STAMPS = int(os.environ.get('STAMPS', '0'))
QSCALE = (18 ** -0.5) * math.log2(math.e)


def f32bits(x):
    return struct.unpack('<I', struct.pack('<f', x))[0]


def vr(a, n):
    return f'v[{a}:{a+n-1}]' if n > 1 else f'v{a}'


class Asm:
    def __init__(self):
        self.lines = []

    def __call__(self, s):
        for ln in s.split('\n'):
            ln = ln.strip()
            if ln:
                self.lines.append(('    ' + ln) if not ln.endswith(':') else ln)

    def srd(self, d, b, nbytes):
        self(f'''s_mov_b32 s{d}, s{b}
                 s_and_b32 s{d+1}, s{b+1}, 0xffff
                 s_mov_b32 s{d+2}, {nbytes}
                 s_mov_b32 s{d+3}, 0x00020000''')

    def dma_seq(self, n, vaddr, srd, s_src, d_src, s_lds, d_lds):
        for i in range(n):
            self(f'''s_mov_b32 m0, s{s_lds}
                     s_add_u32 s{s_lds}, s{s_lds}, {d_lds}
                     buffer_load_dwordx4 v{vaddr}, s[{srd}:{srd+3}], s{s_src} offen lds
                     s_add_u32 s{s_src}, s{s_src}, {d_src}''')

    def stamp(self, i, real=False):
        if not STAMPS:
            return
        op = 's_memrealtime' if real else 's_memtime'
        self(f'''s_waitcnt lgkmcnt(0)
                 {op} s[{84+2*i}:{85+2*i}]
                 s_waitcnt lgkmcnt(0)''')

    def stamp_out(self, kidx, ws):
        if not STAMPS:
            return
        self('s_waitcnt vmcnt(0)')
        self.stamp(7); self.stamp(6, True)
        self(f'''s_lshl_b32 s82, s2, 4
                 s_add_u32 s82, s82, s3
                 s_lshl_b32 s82, s82, 5
                 s_add_u32 s82, s82, {WS_DBG + kidx*256*16*32}
                 v_mov_b32 v8, s84
                 v_mov_b32 v9, s86
                 v_mov_b32 v10, s88
                 v_mov_b32 v11, s90
                 v_mov_b32 v12, s92
                 v_mov_b32 v13, s94
                 v_mov_b32 v14, s96
                 v_mov_b32 v15, s98
                 v_mov_b32 v7, 0
                 buffer_store_dwordx4 v[8:11], v7, s[{ws}:{ws+3}], s82 offen
                 buffer_store_dwordx4 v[12:15], v7, s[{ws}:{ws+3}], s82 offen offset:16''')

    def text(self):
        return '\n'.join(self.lines) + '\n'


def gemm(a, kss, nA, R, offB, offA, depth, swapped=False, first_ks=0):
    nrd = 1 + 2 * nA
    nb = depth

    def reads(i):
        ks = kss[i]
        buf = i % nb
        reg, imm = offB(ks)
        a(f'ds_read_b128 {vr(R["B"][buf], 4)}, v{reg} offset:{imm}')
        for x in range(nA):
            d = R['A'][buf] + 4 * x
            reg, imm, dl = offA(ks, x)
            a(f'ds_read_b64_tr_b16 {vr(d, 2)}, v{reg} offset:{imm}')
            a(f'ds_read_b64_tr_b16 {vr(d+2, 2)}, v{reg} offset:{imm+dl}')

    n = len(kss)
    for i in range(min(nb - 1, n)):
        reads(i)
    for i, ks in enumerate(kss):
        buf = i % nb
        if i + nb - 1 < n:
            reads(i + nb - 1)
        later = min(n - 1, i + nb - 1) - i
        a(f's_waitcnt lgkmcnt({later*nrd})')
        for x in range(nA):
            acc = R['acc'] + 4 * x
            cin = '0' if ks == first_ks else vr(acc, 4)
            a(f'v_mfma_f32_16x16x32_bf16 {vr(acc,4)}, {vr(R["A"][buf]+4*x,4)}, {vr(R["B"][buf],4)}, {cin}')
            if swapped:
                acc = R['acc2']
                cin = '0' if ks == first_ks else vr(acc, 4)
                a(f'v_mfma_f32_16x16x32_bf16 {vr(acc,4)}, {vr(R["B"][buf],4)}, {vr(R["A"][buf]+4*x,4)}, {cin}')


def gemm5(a, Aring, nring, acc, offA, Breg, offB, gate, look=5):
    steps = [(ks, x) for ks in range(18) for x in range(5)]
    fifo = []
    need = {}

    def issue(si):
        ks, x = steps[si]
        if x == 0:
            if gate(ks):
                fifo.clear()
            ob = offB(ks)
            if ob is not None:
                a(f'ds_read_b128 {vr(Breg(ks), 4)}, v{ob[0]} offset:{ob[1]}')
                fifo.append(('b', ks))
        d = Aring + 4 * (si % nring)
        reg, imm = offA(ks, x)
        a(f'ds_read_b64_tr_b16 {vr(d, 2)}, v{reg} offset:{imm}')
        a(f'ds_read_b64_tr_b16 {vr(d+2, 2)}, v{reg} offset:{imm+144}')
        fifo.append(('a0', si)); fifo.append(('a1', si))

    assert look < nring
    for si in range(look):
        issue(si)
    for si, (ks, x) in enumerate(steps):
        if si + look < len(steps):
            issue(si + look)
        if ('a1', si) in fifo:
            later = len(fifo) - 1 - fifo.index(('a1', si))
            assert later <= 15
            a(f's_waitcnt lgkmcnt({later})')
            del fifo[:len(fifo) - later]
        c = acc + 4 * x
        cin = '0' if ks == 0 else vr(c, 4)
        a(f'v_mfma_f32_16x16x32_bf16 {vr(c,4)}, {vr(Aring+4*(si%nring),4)}, {vr(Breg(ks),4)}, {cin}')


_uid = [0]


def lds_wait(a, vaddr, imm, t, s_cnt, n=4):
    _uid[0] += 1
    L = f'L_lw{_uid[0]}'
    a(f's_mov_b32 s{s_cnt}, {SPIN*8}')
    a(f'{L}:')
    if n == 4:
        a(f'''ds_read_b128 {vr(t,4)}, v{vaddr} offset:{imm}
              s_waitcnt lgkmcnt(0)
              v_and_b32 v{t}, v{t}, v{t+1}
              v_and_b32 v{t+2}, v{t+2}, v{t+3}
              v_and_b32 v{t}, v{t}, v{t+2}''')
    else:
        a(f'''ds_read_b32 v{t}, v{vaddr} offset:{imm}
              s_waitcnt lgkmcnt(0)''')
    a(f'''v_cmp_ne_u32 vcc, 1, v{t}
          s_cbranch_vccz {L}_ok
          s_sub_u32 s{s_cnt}, s{s_cnt}, 1
          s_cmp_lg_u32 s{s_cnt}, 0
          s_cbranch_scc1 {L}
          {L}_ok:''')


def addr_wstream(a, dst, s_stream, t0, t1, t2, s_tmp):
    a(f'''s_lshl_b32 s{s_tmp}, {s_stream}, 6
          v_add_u32 v{t0}, s{s_tmp}, v0
          v_mul_u32_u24 v{t1}, 7282, v{t0}
          v_lshrrev_b32 v{t1}, 16, v{t1}
          v_mul_u32_u24 v{dst}, 9, v{t1}
          v_sub_u32 v{t0}, v{t0}, v{dst}
          v_lshlrev_b32 v{t0}, 4, v{t0}
          v_and_b32 v{dst}, 56, v{t1}
          v_and_b32 v{t2}, 1, v{t1}
          v_lshl_add_u32 v{dst}, v{t2}, 2, v{dst}
          v_bfe_u32 v{t2}, v{t1}, 1, 2
          v_add_u32 v{dst}, v{dst}, v{t2}
          v_mul_u32_u24 v{dst}, 1152, v{dst}
          v_add3_u32 v{dst}, v{dst}, v{t0}, s19''')


def addr_trW(a, dst, base_imm, s_add, t0, t1):
    a(f'''v_lshrrev_b32 v{t0}, 4, v0
          v_lshlrev_b32 v{t0}, 3, v{t0}
          v_bfe_u32 v{t1}, v0, 2, 2
          v_lshl_add_u32 v{t0}, v{t1}, 1, v{t0}
          v_mul_u32_u24 v{t0}, 144, v{t0}
          v_and_b32 v{t1}, 3, v0
          v_lshl_add_u32 v{t0}, v{t1}, 3, v{t0}
          v_add_u32 v{t0}, {base_imm}, v{t0}
          v_add_u32 v{dst}, s{s_add}, v{t0}''')


def addr_xfrag(a, dst, vn, vg, t0, s_tmp):
    a(f'''v_and_b32 v{vn}, 15, v0
          v_lshrrev_b32 v{t0}, 2, v{vn}
          v_sub_u32 v{t0}, 0, v{t0}
          v_lshrrev_b32 v{vg}, 4, v0
          v_xor_b32 v{t0}, v{t0}, v{vg}
          v_and_b32 v{t0}, 3, v{t0}
          v_lshlrev_b32 v{t0}, 4, v{t0}
          v_lshl_add_u32 v{dst}, v{vn}, 6, v{t0}
          s_mul_i32 s{s_tmp}, s6, 18432
          v_add_u32 v{dst}, s{s_tmp}, v{dst}''')


def addr_qx(a, d, col_imm, v_col0, v_n, s_base, t0, t1, t2):
    a(f'''v_add_u32 v{t0}, {col_imm}, v{v_col0}
          v_mul_u32_u24 v{t1}, 3641, v{t0}
          v_lshrrev_b32 v{t1}, 16, v{t1}
          v_mul_u32_u24 v{t2}, 18, v{t1}
          v_sub_u32 v{t2}, v{t0}, v{t2}
          v_mul_u32_u24 v{t1}, 576, v{t1}
          v_lshrrev_b32 v{t0}, 3, v{t2}
          v_lshl_add_u32 v{t0}, v{t0}, 4, v{v_n}
          v_lshlrev_b32 v{t0}, 4, v{t0}
          v_and_b32 v{d}, 7, v{t2}
          v_lshl_add_u32 v{t0}, v{d}, 1, v{t0}
          v_cmp_gt_u32 vcc, 16, v{t2}
          v_lshlrev_b32 v{d}, 2, v{v_n}
          v_add_u32 v{d}, 512, v{d}
          v_cndmask_b32 v{d}, v{d}, v{t0}, vcc
          v_add3_u32 v{d}, v{d}, v{t1}, s{s_base}''')


def gen_ka():
    a = Asm()
    L_W = 73728
    L_WC = 154496
    L_FL = 163712
    LDS = 163840
    WS, SA, SB, SC, SD = 40, 44, 48, 52, 56
    a('ka_kernel:')
    a.stamp(0); a.stamp(5, True)
    a(f'''s_cmp_ge_u32 s2, 256
          s_cbranch_scc1 L_a_exit
          s_load_dwordx8 s[8:15], s[0:1], 0
          s_load_dwordx2 s[36:37], s[0:1], 112
          s_load_dwordx8 s[28:35], s[0:1], 80
          s_load_dwordx2 s[16:17], s[0:1], 32
          s_load_dwordx8 s[20:27], s[0:1], 48
          v_lshrrev_b32 v1, 6, v0
          v_and_b32 v0, 63, v0
          v_readfirstlane_b32 s3, v1
          v_mov_b32 v2, {L_FL}
          v_and_b32 v4, 31, v0
          v_lshl_add_u32 v4, v4, 2, v2
          v_mov_b32 v5, 0
          ds_write_b32 v4, v5
          s_and_b32 s4, s2, 7
          s_lshr_b32 s5, s2, 6
          s_lshl_b32 s5, s5, 3
          s_or_b32 s4, s4, s5
          s_lshr_b32 s5, s2, 3
          s_and_b32 s5, s5, 7
          s_and_b32 s6, s3, 3
          s_lshr_b32 s7, s3, 2
          s_mul_i32 s18, s4, 73728
          s_mul_i32 s19, s5, 144
          v_mov_b32 v3, {OOB}
          v_lshlrev_b32 v1, 4, v0
          s_lshl_b32 s39, s6, 2
          v_add_u32 v19, s39, v2
          v_mov_b32 v18, 1
          s_cmp_eq_u32 s7, 2
          s_cbranch_scc1 L_a_helper
          s_cmp_eq_u32 s7, 1
          s_cbranch_scc1 L_a_cons''')

    addr_wstream(a, 7, 's6', 10, 11, 12, 60)
    a('s_add_u32 s61, s6, 4')
    addr_wstream(a, 8, 's61', 10, 11, 12, 60)
    addr_wstream(a, 9, '8', 10, 11, 12, 60)
    a(f'''s_lshl_b32 s62, s6, 10
          s_add_u32 s62, s62, {L_W}
          s_cmp_eq_u32 s6, 3
          s_cselect_b32 s63, 0, s6
          s_and_b32 s64, s6, 1
          s_waitcnt lgkmcnt(0)
          s_barrier''')
    a.srd(SB, 10, 663552)
    a.srd(WS, 36, WS_SIZE)

    def wpiece(vaddr, e, lds_add):
        a(f'''s_add_u32 s60, s62, {e*9216 + lds_add}
              s_mov_b32 m0, s60
              s_mov_b32 s61, {e*73728}
              buffer_load_dwordx4 v{vaddr}, s[{SB}:{SB+3}], s61 offen lds''')

    def wpiece8(s_e, e0):
        a(f'''s_add_u32 s61, s{s_e}, {e0}
              s_mul_i32 s60, s61, 9216
              s_add_u32 s60, s60, {L_W + 8192}
              s_mov_b32 m0, s60
              s_mul_i32 s61, s61, 73728
              buffer_load_dwordx4 v9, s[{SB}:{SB+3}], s61 offen lds''')

    for c in range(2):
        for e in range(3 * c, 3 * c + 3):
            wpiece(7, e, 0); wpiece(8, e, 4096)
        wpiece8(63, 3 * c)
    a('''s_waitcnt vmcnt(7)
         ds_write_b32 v19, v18''')
    for e in (6, 7):
        wpiece(7, e, 0); wpiece(8, e, 4096)
    wpiece8(64, 6)
    a(f'''s_mov_b32 s61, {8*73728}
          buffer_load_dwordx4 v[20:23], v7, s[{SB}:{SB+3}], s61 offen
          buffer_load_dwordx4 v[24:27], v8, s[{SB}:{SB+3}], s61 offen
          buffer_load_dwordx4 v[28:31], v9, s[{SB}:{SB+3}], s61 offen
          v_add_u32 v10, s62, v1
          v_add_u32 v10, {8*9216}, v10
          v_add_u32 v11, {L_W + 80*1024}, v1
          s_waitcnt vmcnt(8)
          ds_write_b32 v19, v18 offset:16''')
    lds_wait(a, 2, 64, 32, 66)
    a('''s_waitcnt vmcnt(0)
         ds_write_b128 v10, v[20:23]
         ds_write_b128 v10, v[24:27] offset:4096
         ds_write_b128 v11, v[28:31]
         s_waitcnt lgkmcnt(0)
         ds_write_b32 v19, v18 offset:32''')
    a.stamp(1)
    a('s_branch L_a_b3a')

    a('L_a_cons:')
    a('s_mov_b32 s60, 0')
    addr_trW(a, 14, L_W, 60, 10, 11)
    a(f'v_add_u32 v15, {9*4608}, v14')
    addr_xfrag(a, 16, 10, 12, 11, 60)
    a('''v_lshlrev_b32 v12, 2, v12
         s_waitcnt lgkmcnt(0)''')
    a.srd(WS, 36, WS_SIZE)
    a.srd(SD, 34, 256)
    a(f'''s_cmp_lt_u32 s2, 8
          s_cbranch_scc0 L_a_noclr
          s_cmp_eq_u32 s6, 0
          s_cbranch_scc0 L_a_noclr
          v_lshrrev_b32 v20, 1, v0
          v_lshlrev_b32 v20, 7, v20
          v_and_b32 v21, 1, v0
          v_lshl_add_u32 v20, v21, 4, v20
          s_lshl_b32 s64, s2, 12
          s_add_u32 s64, s64, {WS_FL}
          v_mov_b32 v24, 0
          v_mov_b32 v25, 0
          v_mov_b32 v26, 0
          v_mov_b32 v27, 0
          buffer_store_dwordx4 v[24:27], v20, s[{WS}:{WS+3}], s64 offen sc1
          v_cmp_eq_u32 vcc, 0, v0
          s_lshl_b32 s64, s2, 2
          s_nop 0
          v_cndmask_b32 v20, v3, v24, vcc
          s_barrier
          s_waitcnt vmcnt(0)
          buffer_store_dword v18, v20, s[{SD}:{SD+3}], s64 offen sc1
          s_branch L_a_clrd
          L_a_noclr:
          s_barrier
          L_a_clrd:''')
    QAD = 84
    for x in range(5):
        for pr in range(2):
            addr_qx(a, QAD + 2 * x + pr, 16 * x + 2 * pr, 12, 10, 60, 9, 11, 13)
    lds_wait(a, 19, 48, 4, 66, n=1)
    a.stamp(1)

    def gateA(ks):
        if ks % 6 == 0:
            lds_wait(a, 2, 16 * (ks // 6), 4, 66)
            return True
        return False
    gemm5(a, 32, 8, 64, lambda ks, x: ((14, ks * 4608 + 32 * x) if ks < 9 else (15, (ks - 9) * 4608 + 32 * x)),
          lambda ks: 20 + 4 * (ks % 3), lambda ks: (16, ks * 1024), gateA)
    lds_wait(a, 19, 64, 4, 66, n=1)
    a(f's_mov_b32 s60, {f32bits(QSCALE)}')
    for x in range(5):
        acc = 64 + 4 * x
        for r in range(4):
            a(f'v_mul_f32 v{acc+r}, s60, v{acc+r}')
        a(f'v_cvt_pk_bf16_f32 v{acc}, v{acc}, v{acc+1}')
        a(f'v_cvt_pk_bf16_f32 v{acc+1}, v{acc+2}, v{acc+3}')
        a(f'ds_write_b32 v{QAD+2*x}, v{acc}')
        a(f'ds_write_b32 v{QAD+2*x+1}, v{acc+1}')
    a('L_a_b3a:')
    a.stamp(2)
    a('s_waitcnt lgkmcnt(0)\ns_barrier')

    QA1, QA2, QB1, QB2 = 4, 8, 12, 10
    K1 = [16, 20]
    K2 = [24, 26]
    VA, VB = 28, 32
    IDX, aK1, aK2, aV = 36, 37, 38, 39
    NMA, NMB = 40, 41
    T0 = 42
    S = [48, 64, 80, 96]
    OA, OB = 112, 128
    a(f'''s_mul_i32 s60, s6, 576
          v_bfe_u32 v{T0}, v0, 4, 1
          v_mul_u32_u24 v{T0}, 18432, v{T0}
          v_add_u32 v{T0}, s60, v{T0}
          v_and_b32 v{T0+2}, 15, v0
          v_lshl_add_u32 v{T0+1}, v{T0+2}, 2, v{T0}
          v_lshl_add_u32 v{T0}, v{T0+2}, 4, v{T0}
          v_lshrrev_b32 v{T0+3}, 5, v0
          v_lshl_add_u32 v{T0}, v{T0+3}, 8, v{T0}
          ds_read_b128 {vr(QA1,4)}, v{T0}
          ds_read_b128 {vr(QB1,4)}, v{T0} offset:36864
          ds_read_b32 v{QA2}, v{T0+1} offset:512
          ds_read_b32 v{QB2}, v{T0+1} offset:{36864+512}
          v_and_b32 v{T0+2}, 31, v0
          v_lshlrev_b32 v{aK2}, 2, v{T0+2}
          v_mov_b32 v{IDX}, 0xdddd
          v_mov_b32 v{K2[0]+1}, 0x3f80
          v_mov_b32 v{K2[1]+1}, 0x3f80
          v_mov_b32 v{QA2+1}, 0
          v_mov_b32 v{QB2+1}, 0
          s_mul_i32 s61, s7, {32*TILE_B}
          v_add_u32 v{aK1}, s61, v1
          v_add_u32 v{aK2}, s61, v{aK2}
          v_mul_u32_u24 v{T0+1}, 288, v{T0+3}
          v_lshl_add_u32 v{T0+1}, v{T0+2}, 4, v{T0+1}
          v_cmp_gt_u32 vcc, 18, v{T0+2}
          v_mov_b32 v{T0+2}, 576
          s_lshl_b32 s64, s5, 2
          v_cndmask_b32 v{aV}, v{T0+2}, v{T0+1}, vcc
          v_add_u32 v{aV}, s61, v{aV}
          s_add_u32 s64, s64, s6
          v_cmp_gt_u32 vcc, 32, v0
          s_mov_b32 s65, 0
          s_lshl_b32 s60, s3, 10
          s_waitcnt lgkmcnt(0)
          v_cndmask_b32 v{QA2}, 0, v{QA2}, vcc
          v_cndmask_b32 v{QB2}, 0, v{QB2}, vcc
          s_barrier''')
    a.stamp(3)
    for add in (0, 73, 8, 81):
        a(f'''s_add_u32 s61, s60, {add*1024}
              s_mov_b32 m0, s61
              s_nop 0
              buffer_load_dwordx4 v1, s[{WS}:{WS+3}], s61 offen lds''')
    a('''s_waitcnt vmcnt(0)
         s_barrier''')
    a.stamp(4)

    def qk1(dst, kb, q1):
        a(f'v_mfma_f32_32x32x16_bf16 {vr(dst,16)}, {vr(K1[kb],4)}, {vr(q1,4)}, 0')

    def qk2(dst, kb, q2):
        a(f'v_mfma_f32_32x32x8_bf16 {vr(dst,16)}, {vr(K2[kb],2)}, {vr(q2,2)}, {vr(dst,16)}')

    def pv(o, v, p):
        a(f'v_smfmac_f32_32x32x32_bf16 {vr(o,16)}, {vr(v,4)}, {vr(p,8)}, v{IDX}')

    def rdK(kb, tile):
        a(f'ds_read_b128 {vr(K1[kb],4)}, v{aK1} offset:{tile*TILE_B}')
        a(f'ds_read_b32 v{K2[kb]}, v{aK2} offset:{tile*TILE_B+1024}')

    def rdV(reg, tile, half):
        a(f'ds_read_b128 {vr(reg,4)}, v{aV} offset:{tile*TILE_B+1152+592*half}')

    def maxtree(dst, s, init=None):
        if init is None:
            a(f'v_max3_f32 v{dst}, v{s}, v{s+1}, v{s+2}')
            rest = list(range(3, 16))
        else:
            rest = list(range(0, 16))
        while len(rest) >= 2:
            a(f'v_max3_f32 v{dst}, v{dst}, v{s+rest[0]}, v{s+rest[1]}')
            rest = rest[2:]
        if rest:
            a(f'v_max_f32 v{dst}, v{dst}, v{s+rest[0]}')

    def set_bias():
        for nm, q2, t in ((NMA, QA2, T0), (NMB, QB2, T0 + 1)):
            a(f'v_mov_b32 v{t}, v{nm}')
        a('s_nop 1')
        for nm, q2, t in ((NMA, QA2, T0), (NMB, QB2, T0 + 1)):
            a(f'v_permlane32_swap_b32 v{nm}, v{t}')
        a('v_cmp_gt_u32 vcc, 32, v0')
        for nm, q2, t in ((NMA, QA2, T0), (NMB, QB2, T0 + 1)):
            a(f'''v_max_f32 v{nm}, v{nm}, v{t}
                  v_cvt_pk_bf16_f32 v{t}, -v{nm}, 0
                  v_lshlrev_b32 v{nm}, 16, v{t}
                  v_cndmask_b32 v{q2+1}, 0, v{t}, vcc''')

    def zero_state():
        for i in range(16):
            a(f'v_mov_b32 v{OA+i}, 0')
            a(f'v_mov_b32 v{OB+i}, 0')
        for i in range(8, 16):
            a(f'v_mov_b32 v{S[3]+i}, 0')
        for i in range(4):
            a(f'v_mov_b32 v{VB+i}, 0')

    rdK(0, 0)
    a('s_waitcnt lgkmcnt(0)')
    qk1(S[0], 0, QA1); qk2(S[0], 0, QA2)
    qk1(S[1], 0, QB1); qk2(S[1], 0, QB2)
    zero_state()
    maxtree(NMA, S[0])
    maxtree(NMB, S[1])
    set_bias()
    a('L_a_restart:')
    rdK(0, 0)
    rdK(1, 1)
    rdV(VA, 0, 0)
    a('s_waitcnt lgkmcnt(3)')
    qk1(S[0], 0, QA1); qk2(S[0], 0, QA2)
    a('s_mov_b32 s66, 16')
    a('s_nop 10')
    a('.p2align 6')
    a('L_a_loop:')

    def exps(buf, lo):
        for i in range(lo, lo + 4):
            a(f'v_exp_f32 v{S[buf]+i}, v{S[buf]+i}')

    for tl in range(2):
        kb = tl & 1
        cur, nxt, prv = 2 * tl, 2 * tl + 1, (2 * tl + 3) % 4
        qk1(S[nxt], kb, QB1)
        exps(cur, 0)
        qk2(S[nxt], kb, QB2)
        exps(cur, 4)
        pv(OB, VB, S[prv] + 8)
        rdV(VB, tl, 1)
        exps(cur, 8)
        a('s_waitcnt lgkmcnt(1)')
        pv(OA, VA, S[cur])
        exps(cur, 12)
        cur, nxt, prv = 2 * tl + 1, (2 * tl + 2) % 4, 2 * tl
        qk1(S[nxt], kb ^ 1, QA1)
        exps(cur, 0)
        qk2(S[nxt], kb ^ 1, QA2)
        rdK(kb, tl + 2)
        exps(cur, 4)
        a('s_waitcnt lgkmcnt(2)')
        pv(OA, VB, S[prv] + 8)
        exps(cur, 8)
        pv(OB, VA, S[cur])
        rdV(VA, tl + 1, 0)
        exps(cur, 12)
    a(f'''v_add_u32 v{aK1}, {2*TILE_B}, v{aK1}
          v_add_u32 v{aK2}, {2*TILE_B}, v{aK2}
          v_add_u32 v{aV}, {2*TILE_B}, v{aV}
          s_add_u32 s67, s66, s65
          s_cmp_eq_u32 s67, 15
          s_cbranch_scc0 L_a_nobar
          s_barrier
          L_a_nobar:
          s_sub_u32 s66, s66, 1
          s_cmp_lg_u32 s66, 0
          s_cbranch_scc1 L_a_loop''')
    pv(OB, VB, S[3] + 8)
    a(f'''v_subrev_u32 v{aK1}, {32*TILE_B}, v{aK1}
          v_subrev_u32 v{aK2}, {32*TILE_B}, v{aK2}
          v_subrev_u32 v{aV}, {32*TILE_B}, v{aV}
          s_waitcnt lgkmcnt(0)
          s_nop 9''')
    a(f'''s_cmp_eq_u32 s65, 0
          s_cbranch_scc0 L_a_ok
          v_add_f32 v{T0}, |v{OA}|, |v{OB}|''')
    for i in range(1, 10):
        a(f'v_add_f32 v{T0}, v{T0}, |v{OA+i}|')
        a(f'v_add_f32 v{T0}, v{T0}, |v{OB+i}|')
    a(f'''v_mov_b32 v{T0+2}, 0x7e800000
          v_cmp_nlt_f32 vcc, v{T0}, v{T0+2}
          v_mov_b32 v{T0+2}, 0x4f800000
          v_cmp_nlt_f32 s[68:69], v{OA+12}, v{T0+2}
          v_cmp_nlt_f32 s[70:71], v{OB+12}, v{T0+2}
          s_or_b64 vcc, vcc, s[68:69]
          s_or_b64 vcc, vcc, s[70:71]
          s_cbranch_vccz L_a_ok
          s_mov_b32 s65, 64
          v_mov_b32 v{QA2+1}, 0
          v_mov_b32 v{QB2+1}, 0
          v_mov_b32 v{NMA}, 0xff800000
          v_mov_b32 v{NMB}, 0xff800000
          s_mov_b32 s66, 32
          L_a_mloop:''')
    rdK(0, 0)
    a(f'''v_add_u32 v{aK1}, {TILE_B}, v{aK1}
          v_add_u32 v{aK2}, {TILE_B}, v{aK2}
          s_waitcnt lgkmcnt(0)''')
    qk1(S[0], 0, QA1); qk2(S[0], 0, QA2)
    qk1(S[1], 0, QB1); qk2(S[1], 0, QB2)
    a('s_nop 11')
    maxtree(NMA, S[0], init=True)
    maxtree(NMB, S[1], init=True)
    a(f'''s_sub_u32 s66, s66, 1
          s_cmp_lg_u32 s66, 0
          s_cbranch_scc1 L_a_mloop
          v_subrev_u32 v{aK1}, {32*TILE_B}, v{aK1}
          v_subrev_u32 v{aK2}, {32*TILE_B}, v{aK2}''')
    set_bias()
    zero_state()
    a('s_branch L_a_restart')
    a('L_a_ok:')
    a(f'''s_mul_i32 s60, s3, 3072
          s_xor_b32 s61, s3, 4
          s_mul_i32 s61, s61, 3072
          v_add_u32 v{T0}, s60, v1
          v_add_u32 v{T0+1}, s61, v1
          s_cmp_eq_u32 s7, 0
          s_cbranch_scc1 L_a_x0''')
    for i in list(range(10)) + [12]:
        a(f'v_swap_b32 v{OA+i}, v{OB+i}')
    a(f'v_swap_b32 v{NMA}, v{NMB}')
    a('L_a_x0:')
    a(f'''v_mov_b32 v{OB+10}, v{OB+12}
          v_mov_b32 v{OB+11}, v{NMB}
          s_lshl_b32 s60, s4, 2
          s_lshl_b32 s61, s7, 1
          s_add_u32 s60, s60, s61
          s_mul_i32 s60, s60, 18432
          s_add_u32 s60, s60, {WS_O}
          s_lshr_b32 s61, s64, 1
          s_lshl_b32 s61, s61, 10
          s_and_b32 s62, s64, 1
          s_lshl_b32 s62, s62, 9
          s_add_u32 s61, s61, s62
          s_add_u32 s61, s61, s60
          v_bfe_u32 v{T0+2}, v0, 4, 1
          v_mul_u32_u24 v{T0+2}, 18432, v{T0+2}
          v_and_b32 v{T0+3}, 15, v0
          v_lshl_add_u32 v{T0+2}, v{T0+3}, 4, v{T0+2}
          v_lshrrev_b32 v{T0+3}, 5, v0
          v_lshl_add_u32 v{T0+3}, v{T0+3}, 8, v{T0+2}
          v_cmp_gt_u32 vcc, 32, v0
          s_lshr_b32 s62, s64, 4
          s_add_u32 s62, s62, 16
          s_lshl_b32 s62, s62, 10
          v_cndmask_b32 v{T0+2}, v3, v{T0+2}, vcc
          s_bfe_u32 s63, s64, 0x20002
          s_lshl_b32 s63, s63, 8
          s_add_u32 s62, s62, s63
          s_and_b32 s63, s64, 3
          s_lshl_b32 s63, s63, 2
          s_add_u32 s62, s62, s63
          s_add_u32 s62, s62, s60
          s_barrier
          ds_write_b128 v{T0}, {vr(OB,4)}
          ds_write_b128 v{T0}, {vr(OB+4,4)} offset:1024
          ds_write_b128 v{T0}, {vr(OB+8,4)} offset:2048
          s_waitcnt lgkmcnt(0)
          s_barrier
          ds_read_b128 {vr(OB+8,4)}, v{T0+1} offset:2048
          ds_read_b128 {vr(OB,4)}, v{T0+1}
          ds_read_b128 {vr(OB+4,4)}, v{T0+1} offset:1024
          s_waitcnt lgkmcnt(2)
          v_min_f32 v{T0}, v{NMA}, v{OB+11}
          v_sub_f32 v{T0+1}, v{T0}, v{NMA}
          v_sub_f32 v{T0}, v{T0}, v{OB+11}
          v_exp_f32 v{T0+1}, v{T0+1}
          v_exp_f32 v{T0}, v{T0}
          s_nop 0
          v_mul_f32 v{T0+4}, v{T0+1}, v{OA+12}
          v_fmac_f32 v{T0+4}, v{T0}, v{OB+10}
          v_rcp_f32 v{T0+4}, v{T0+4}
          s_nop 0
          v_mul_f32 v{T0+1}, v{T0+1}, v{T0+4}
          v_mul_f32 v{T0}, v{T0}, v{T0+4}
          s_waitcnt lgkmcnt(0)''')
    for i in range(10):
        a(f'v_mul_f32 v{OA+i}, v{OA+i}, v{T0+1}')
        a(f'v_fmac_f32 v{OA+i}, v{OB+i}, v{T0}')
    for i in range(5):
        a(f'v_cvt_pk_bf16_f32 v{S[0]+i}, v{OA+2*i}, v{OA+2*i+1}')
    a(f'''buffer_store_dwordx4 {vr(S[0],4)}, v{T0+3}, s[{WS}:{WS+3}], s61 offen
          buffer_store_dword v{S[0]+4}, v{T0+2}, s[{WS}:{WS+3}], s62 offen''')
    a.stamp_out(0, WS)
    a('s_endpgm')

    a('L_a_helper:')
    a(f'''s_setprio 3
          s_cmp_ge_u32 s5, 3
          s_cselect_b32 s61, 3, 0
          s_sub_u32 s60, s5, s61
          s_lshl_b32 s61, s60, 4
          s_cmp_eq_u32 s60, 2
          s_cselect_b32 s61, 20, s61
          v_mul_u32_u24 v9, 36, v0
          v_add_u32 v9, s61, v9
          v_lshrrev_b32 v6, 2, v0
          v_lshrrev_b32 v8, 4, v0
          v_sub_u32 v8, 0, v8
          v_xor_b32 v8, v8, v0
          v_and_b32 v8, 3, v8
          v_lshlrev_b32 v8, 4, v8
          v_mul_u32_u24 v6, 1152, v6
          v_add_u32 v6, v6, v8
          s_mul_i32 s61, s6, 18432
          s_add_u32 s60, s61, s18
          s_mov_b32 s62, 0
          s_mov_b32 s63, {L_WC}
          s_waitcnt lgkmcnt(0)''')
    a.srd(SB, 8, 2359296)
    a.dma_seq(18, 6, SB, 60, 64, 61, 1024)
    a('s_barrier')
    a(f'''s_cmp_lt_u32 s5, 3
          s_cselect_b32 s{SC}, s12, s14
          s_cselect_b32 s{SC+1}, s13, s15
          s_and_b32 s{SC+1}, s{SC+1}, 0xffff
          s_mov_b32 s{SC+2}, 20736
          s_mov_b32 s{SC+3}, 0x00020000''')
    a.srd(SA, 30, 1152)
    a.srd(WS, 36, WS_SIZE)
    a.srd(SD, 34, 256)
    a('''s_cmp_lt_u32 s5, 6
         s_cbranch_scc0 L_a_nowc''')
    a.dma_seq(9, 9, SC, 62, 2304, 63, 1024)
    a('''s_branch L_a_wcd
         L_a_nowc:
         v_lshlrev_b32 v11, 1, v0''')
    for m in range(9):
        a(f'buffer_load_ushort v{20+m}, v11, s[{SA}:{SA+3}], 0 offen offset:{128*m}')
    a(f'''v_add_u32 v10, {L_WC}, v1
          s_waitcnt vmcnt(0)''')
    for m in range(9):
        a(f'ds_write_b16 v10, v{20+m} offset:{1024*m}')
    a('L_a_wcd:')
    RH = dict(B=[20, 24, 28, 32, 36], A=[40, 44, 48, 52, 56], acc=64, acc2=68)
    a(f'''v_lshrrev_b32 v15, 4, v0
          v_lshlrev_b32 v15, 3, v15
          v_bfe_u32 v16, v0, 2, 2
          v_add_u32 v15, v15, v16
          v_and_b32 v16, 1, v0
          v_lshlrev_b32 v16, 3, v16
          v_lshl_add_u32 v17, v15, 4, v16
          v_add_u32 v17, {L_WC}, v17''')
    addr_xfrag(a, 16, 4, 5, 15, 60)
    a(f'''s_and_b32 s60, s6, 1
          s_lshl_b32 s60, s60, 4
          v_add_u32 v6, s60, v4
          s_lshl_b32 s64, s4, 1
          s_lshr_b32 s60, s6, 1
          s_add_u32 s64, s64, s60
          s_mul_i32 s64, s64, {TILE_B}
          s_add_u32 s64, s64, {WS_KV}
          v_and_b32 v15, 1, v5
          v_and_b32 v75, 7, v0
          v_lshlrev_b32 v75, 2, v75
          v_mov_b32 v76, v19
          v_mov_b32 v73, 1
          s_waitcnt vmcnt(0) lgkmcnt(0)
          ds_write_b32 v76, v73 offset:48
          buffer_load_dword v72, v75, s[{SD}:{SD+3}], 0 offen sc1''')
    a.stamp(1)
    a('s_waitcnt lgkmcnt(0)')
    gemm(a, list(range(18)), 1, RH, lambda ks: (16, ks * 1024), lambda ks, x: (17, ks * 512, 64), 5, swapped=True)
    E, E2 = 64, 68
    a(f'''ds_write_b32 v76, v73 offset:64
          s_nop 5
          s_cmp_lt_u32 s5, 3
          s_cbranch_scc0 L_a_e3
          v_cvt_pk_bf16_f32 v20, v{E}, v{E+1}
          v_cvt_pk_bf16_f32 v21, v{E+2}, v{E+3}
          s_cmp_eq_u32 s5, 2
          s_cbranch_scc1 L_a_e2
          s_lshl_b32 s60, s5, 9
          v_lshlrev_b32 v18, 4, v6
          v_lshl_add_u32 v18, v15, 3, v18
          v_cmp_lt_u32 vcc, 31, v0
          s_add_u32 s64, s64, s60
          s_nop 0
          v_cndmask_b32 v18, v3, v18, vcc
          buffer_store_dwordx2 v[20:21], v18, s[{WS}:{WS+3}], s64 offen sc1
          s_branch L_a_edone
          L_a_e2:
          v_cmp_lt_u32 vcc, 47, v0
          v_lshlrev_b32 v18, 2, v6
          s_nop 0
          v_cndmask_b32 v18, v3, v18, vcc
          buffer_store_dword v21, v18, s[{WS}:{WS+3}], s64 offen offset:1024 sc1
          s_branch L_a_edone
          L_a_e3:
          s_cmp_lt_u32 s5, 6
          s_cbranch_scc0 L_a_e6''')
    a(f'''v_cvt_pk_bf16_f32 v20, v{E2}, v{E2+1}
          v_cvt_pk_bf16_f32 v21, v{E2+2}, v{E2+3}
          s_sub_u32 s60, s5, 3
          s_lshl_b32 s60, s60, 7
          s_cmp_eq_u32 s5, 5
          s_cselect_b32 s60, 160, s60
          s_cselect_b32 s61, 13, 7
          s_and_b32 s62, s6, 1
          s_mul_i32 s62, s62, 592
          s_add_u32 s64, s64, s62
          v_lshrrev_b32 v18, 5, v0
          v_mul_u32_u24 v18, 288, v18
          v_lshl_add_u32 v18, v4, 4, v18
          v_lshl_add_u32 v18, v15, 3, v18
          v_add_u32 v18, s60, v18
          v_cmp_lt_u32 vcc, s61, v4
          v_lshlrev_b32 v22, 3, v15
          v_add_u32 v22, {576+128}, v22
          v_cndmask_b32 v18, v3, v18, vcc
          s_cmp_eq_u32 s5, 5
          s_cbranch_scc0 L_a_e4
          v_and_b32 v23, 47, v0
          v_cmp_eq_u32 vcc, 0, v23
          v_mov_b32 v23, 0x3f803f80
          s_nop 0
          v_cndmask_b32 v18, v18, v22, vcc
          v_cndmask_b32 v20, v20, v23, vcc
          v_cndmask_b32 v21, v21, v23, vcc
          L_a_e4:
          buffer_store_dwordx2 v[20:21], v18, s[{WS}:{WS+3}], s64 offen offset:{1152-128} sc1
          s_branch L_a_edone
          L_a_e6:
          v_mul_f32 v20, {f32bits(-math.log2(math.e))}, v{E}
          v_exp_f32 v20, v20
          s_lshl_b32 s60, s4, 8
          s_lshl_b32 s61, s6, 6
          v_add_f32 v20, 1.0, v20
          v_rcp_f32 v20, v20
          s_add_u32 s60, s60, s61
          s_add_u32 s60, s60, {WS_G}
          s_sub_u32 s61, s5, 4
          s_lshl_b32 s61, s61, 1
          s_sub_u32 s61, s61, 2
          v_cmp_eq_u32 vcc, s61, v5
          v_lshlrev_b32 v18, 2, v4
          s_nop 0
          v_cndmask_b32 v18, v3, v18, vcc
          buffer_store_dword v20, v18, s[{WS}:{WS+3}], s60 offen
          L_a_edone:
          s_mov_b32 s66, {SPIN}
          L_a_clrw:
          s_waitcnt vmcnt(0)
          v_cmp_ne_u32 vcc, 1, v72
          s_cbranch_vccz L_a_clrok
          s_sub_u32 s66, s66, 1
          s_cmp_eq_u32 s66, 0
          s_cbranch_scc1 L_a_clrok
          s_sleep 2
          buffer_load_dword v72, v75, s[{SD}:{SD+3}], 0 offen sc1
          s_branch L_a_clrw
          L_a_clrok:
          s_lshl_b32 s65, s2, 7
          s_add_u32 s65, s65, s39
          s_add_u32 s65, s65, {WS_FL}
          v_cmp_eq_u32 vcc, 0, v0
          v_mov_b32 v74, 0
          s_nop 0
          v_cndmask_b32 v74, v3, v74, vcc
          buffer_store_dword v73, v74, s[{WS}:{WS+3}], s65 offen sc1
          s_waitcnt lgkmcnt(0)''')
    a.stamp(2)
    a('s_barrier')
    a(f'''s_cmp_eq_u32 s6, 0
          s_cbranch_scc0 L_a_kvok
          v_lshlrev_b32 v18, 7, v0
          s_mov_b32 s60, {WS_FL}
          s_mov_b32 s61, {WS_FL+8192}
          s_mov_b32 s62, {WS_FL+16384}
          s_mov_b32 s63, {WS_FL+24576}
          s_mov_b32 s66, {SPIN}
          L_a_kvpoll:
          buffer_load_dwordx4 v[20:23], v18, s[{WS}:{WS+3}], s60 offen sc1
          buffer_load_dwordx4 v[24:27], v18, s[{WS}:{WS+3}], s61 offen sc1
          buffer_load_dwordx4 v[28:31], v18, s[{WS}:{WS+3}], s62 offen sc1
          buffer_load_dwordx4 v[32:35], v18, s[{WS}:{WS+3}], s63 offen sc1
          s_waitcnt vmcnt(0)''')
    for i in range(21, 36):
        a(f'v_and_b32 v20, v20, v{i}')
    a(f'''v_cmp_ne_u32 vcc, 1, v20
          s_cbranch_vccz L_a_kvok
          s_sub_u32 s66, s66, 1
          s_cmp_lg_u32 s66, 0
          s_cbranch_scc1 L_a_kvpoll
          L_a_kvok:''')
    a.stamp(3)
    a('s_barrier')
    a('s_barrier')
    a(f'''s_lshl_b32 s60, s6, 10
          s_add_u32 s60, s60, {16*1024}
          s_add_u32 s61, s60, {73*1024}
          s_mov_b32 s66, 14
          L_a_kvdma:
          s_mov_b32 m0, s60
          s_sub_u32 s66, s66, 1
          buffer_load_dwordx4 v1, s[{WS}:{WS+3}], s60 offen lds
          s_mov_b32 m0, s61
          s_add_u32 s60, s60, 4096
          buffer_load_dwordx4 v1, s[{WS}:{WS+3}], s61 offen lds
          s_add_u32 s61, s61, 4096
          s_cmp_lg_u32 s66, 0
          s_cbranch_scc1 L_a_kvdma
          s_cmp_eq_u32 s6, 0
          s_cbranch_scc0 L_a_kvd2
          s_mov_b32 m0, s60
          s_nop 0
          buffer_load_dwordx4 v1, s[{WS}:{WS+3}], s60 offen lds
          s_mov_b32 m0, s61
          s_nop 0
          buffer_load_dwordx4 v1, s[{WS}:{WS+3}], s61 offen lds
          L_a_kvd2:''')
    a.srd(SA, 20, 2359296)
    a.srd(SB, 22, 2359296)
    a.srd(SC, 24, 4608)
    KK, VV, SK = 20, 40, 60
    a(f'''s_mul_i32 s60, s6, 18432
          s_add_u32 s60, s60, s18
          s_add_u32 s60, s60, s19
          v_lshlrev_b32 v4, 2, v0
          v_add_u32 v4, s60, v4
          v_cmp_gt_u32 vcc, 36, v0
          s_mul_i32 s61, s5, 576
          v_add_u32 v6, s61, v1
          v_cndmask_b32 v4, v3, v4, vcc
          v_cndmask_b32 v6, v3, v6, vcc
          v_subrev_u32 v5, 4608, v4
          buffer_load_dwordx4 v[{SK}:{SK+3}], v6, s[{SC}:{SC+3}], 0 offen
          s_mov_b32 s60, 0''')
    for j in range(4):
        a(f'buffer_load_dword v{KK+j}, v5, s[{SA}:{SA+3}], 0 offen offset:{1152*j}')
    a(f'buffer_load_dword v{VV}, v5, s[{SB}:{SB+3}], 0 offen offset:3456')
    for q in range(4):
        for j in range(4):
            a(f'buffer_load_dword v{KK+4+4*q+j}, v4, s[{SA}:{SA+3}], s60 offen offset:{1152*j}')
            a(f'buffer_load_dword v{VV+1+4*q+j}, v4, s[{SB}:{SB+3}], s60 offen offset:{1152*j}')
        a('s_add_u32 s60, s60, 4608')
    a('s_waitcnt vmcnt(38)\ns_barrier')
    a(f'''s_mul_i32 s60, s5, {72*UR_CH}
          s_lshl_b32 s61, s4, 7
          s_lshl_b32 s62, s6, 5
          s_add_u32 s61, s61, s62
          s_sub_u32 s60, s60, s61
          s_add_u32 s60, s60, {WS_UR + 4064}
          v_mul_u32_u24 v4, {2*UR_CH}, v0
          v_add_u32 v4, s60, v4
          v_cmp_gt_u32 vcc, 36, v0
          s_mov_b32 s61, {UR_COPY}
          s_mov_b32 s62, {UR_CH}
          s_mov_b32 s63, {UR_CH+UR_COPY}
          v_cndmask_b32 v4, v3, v4, vcc
          s_waitcnt vmcnt(0)''')
    X, S8, U, P = 64, 104, 112, 132
    for ch in range(2):
        for j in range(37):
            if ch == 0:
                a(f'v_lshlrev_b32 v{X+j}, 16, v{KK+j}')
            else:
                a(f'v_and_b32 v{X+j}, 0xffff0000, v{KK+j}')
        for d in range(2):
            a(f'v_lshlrev_b32 v{S8+2*d}, 16, v{SK+2*ch+d}')
            a(f'v_and_b32 v{S8+2*d+1}, 0xffff0000, v{SK+2*ch+d}')
        for tau in range(17):
            u = U + tau
            a(f'v_mul_f32 v{u}, v{S8}, v{X+tau+3}')
            for i in range(1, 4):
                a(f'v_fmac_f32 v{u}, v{S8+i}, v{X+tau+3-i}')
            a(f'v_mul_f32 v{u}, v{u}, v{X+20+tau}')
        Pc = P + 16 * ch
        for d in range(8):
            a(f'v_cvt_pk_bf16_f32 v{Pc+d}, v{U+16-2*d}, v{U+15-2*d}')
            a(f'v_cvt_pk_bf16_f32 v{Pc+8+d}, v{U+15-2*d}, v{U+14-2*d}')
        s0, s1 = ('0', 's61') if ch == 0 else ('s62', 's63')
        a(f'''buffer_store_dwordx4 {vr(Pc,4)}, v4, s[{WS}:{WS+3}], {s0} offen sc1
              buffer_store_dwordx4 {vr(Pc+4,4)}, v4, s[{WS}:{WS+3}], {s0} offen offset:16 sc1
              buffer_store_dwordx4 {vr(Pc+8,4)}, v4, s[{WS}:{WS+3}], {s1} offen sc1
              buffer_store_dwordx4 {vr(Pc+12,4)}, v4, s[{WS}:{WS+3}], {s1} offen offset:16 sc1''')
    a(f'''s_add_u32 s60, s4, s6
          s_cmp_eq_u32 s60, 0
          s_cbranch_scc0 L_a_nopad
          v_mov_b32 v20, 0
          v_mov_b32 v21, 0
          v_mov_b32 v22, 0
          v_mov_b32 v23, 0''')
    for so in ('0', 's61', 's62', 's63'):
        a(f'buffer_store_dwordx4 v[20:23], v4, s[{WS}:{WS+3}], {so} offen offset:32 sc1')
        a(f'buffer_store_dwordx4 v[20:23], v4, s[{WS}:{WS+3}], {so} offen offset:48 sc1')
    a(f'''L_a_nopad:
          v_cmp_eq_u32 vcc, 0, v0
          v_mov_b32 v20, 1
          v_mov_b32 v21, 16
          v_cndmask_b32 v21, v3, v21, vcc
          s_waitcnt vmcnt(0)
          buffer_store_dword v20, v21, s[{WS}:{WS+3}], s65 offen sc1''')
    a.stamp(4)
    AF, BF, ACC = 32, 64, 128
    aA, aB, aB0, aU, aY = 4, 5, 6, 7, 8
    DG = 12
    a(f'''s_lshl_b32 s60, s6, 5
          s_add_u32 s60, s60, s4
          s_cmp_ge_u32 s60, {0 if os.environ.get('NOCONV') else 72}
          s_cbranch_scc1 L_a_repack
          s_mul_i32 s64, s5, 72
          s_add_u32 s64, s64, s60
          s_lshl_b32 s60, s64, 12
          s_add_u32 s{SA}, s26, s60
          s_addc_u32 s{SA+1}, s27, 0
          s_and_b32 s{SA+1}, s{SA+1}, 0xffff
          s_mov_b32 s{SA+2}, 4096
          s_mov_b32 s{SA+3}, 0x00020000
          s_mul_i32 s60, s64, {UR_CH}
          s_add_u32 s60, s60, {WS_UR}
          s_add_u32 s{SB}, s36, s60
          s_addc_u32 s{SB+1}, s37, 0
          s_and_b32 s{SB+1}, s{SB+1}, 0xffff
          s_mov_b32 s{SB+2}, {UR_CH}
          s_mov_b32 s{SB+3}, 0x00020000''')
    a.srd(SC, 28, 1152)
    a(f'''v_and_b32 v1, 15, v0
          v_bfe_u32 v2, v0, 4, 1
          v_lshrrev_b32 v23, 5, v0
          v_and_b32 v9, 7, v0
          v_bfe_u32 v10, v0, 3, 1
          v_lshl_or_b32 v9, v9, 1, v10
          v_lshlrev_b32 v11, 3, v2
          v_lshlrev_b32 v20, 4, v23
          v_sub_u32 v11, v11, v20
          v_sub_u32 v11, v11, v9
          v_add_u32 v11, 2047, v11
          v_lshlrev_b32 v11, 1, v11
          v_xor_b32 v20, 1, v10
          v_mul_u32_u24 v20, {UR_COPY-2}, v20
          v_add_u32 v11, v11, v20
          v_subrev_u32 v{aA}, {64*56}, v11
          v_sub_u32 v11, v1, v23
          v_lshlrev_b32 v11, 5, v11
          v_lshl_add_u32 v{aB0}, v2, 4, v11
          v_add_u32 v{aB}, 512, v{aB0}
          v_lshlrev_b32 v11, 5, v1
          v_lshlrev_b32 v20, 4, v2
          v_sub_u32 v11, v20, v11
          v_add_u32 v{aU}, {4064 - 512*7}, v11
          v_lshl_or_b32 v11, v2, 1, v23
          v_lshlrev_b32 v11, 3, v11
          v_lshl_add_u32 v{aY}, v1, 5, v11
          s_lshl_b32 s67, s64, 12
          s_add_u32 s67, s67, {WS_Y}
          s_lshl_b32 s60, s64, 1
          v_mov_b32 v21, s60
          buffer_load_ushort v22, v21, s[{SC}:{SC+3}], 0 offen''')

    def loadB(buf):
        a(f'buffer_load_dwordx4 {vr(BF+32*buf,4)}, v{aB0}, s[{SA}:{SA+3}], 0 offen')
        for d in range(1, 8):
            a(f'buffer_load_dwordx4 {vr(BF+32*buf+4*d,4)}, v{aB}, s[{SA}:{SA+3}], 0 offen offset:{512*(d-1)}')
    loadB(0)
    a(f'''v_and_b32 v11, 7, v0
          v_bfe_u32 v20, v0, 3, 2
          v_lshl_or_b32 v11, v20, 6, v11
          v_lshlrev_b32 v11, 7, v11
          s_lshl_b32 s60, s5, 10
          s_add_u32 s60, s60, {WS_FL+16}
          s_mov_b32 s66, {SPIN}
          L_a_upoll:
          buffer_load_dwordx4 v[24:27], v11, s[{WS}:{WS+3}], s60 offen sc1
          s_waitcnt vmcnt(0)
          v_and_b32 v24, v24, v25
          v_and_b32 v26, v26, v27
          v_and_b32 v24, v24, v26
          v_cmp_ne_u32 vcc, 1, v24
          s_cbranch_vccz L_a_uok
          s_sleep 4
          s_sub_u32 s66, s66, 1
          s_cmp_lg_u32 s66, 0
          s_cbranch_scc1 L_a_upoll
          L_a_uok:''')
    for c in range(8):
        a(f'buffer_load_dwordx4 {vr(BF+32+4*c,4)}, v{aU}, s[{SB}:{SB+3}], 0 offen offset:{512*(7-c)}')
    for i in range(8):
        a(f'buffer_load_dwordx4 {vr(AF+4*i,4)}, v{aA}, s[{SB}:{SB+3}], 0 offen offset:{64*(56-8*i)}')
    a(f'''v_lshlrev_b32 v11, 3, v2
          v_add_u32 v11, v11, v9
          v_sub_u32 v11, 15, v11
          v_lshl_add_u32 v11, v23, 4, v11
          v_and_b32 v20, 1, v11
          v_lshlrev_b32 v20, 4, v20
          v_lshrrev_b32 v11, 1, v11
          v_lshlrev_b32 v22, v20, v22''')
    for d in range(4):
        a(f'''v_cmp_eq_u32 vcc, {d}, v11
              s_nop 1
              v_cndmask_b32 v{DG+d}, 0, v22, vcc''')
    a('s_waitcnt vmcnt(8)')
    a('s_nop 1')
    for c in range(8):
        a(f'v_mfma_f32_16x16x32_bf16 {vr(ACC+4*c,4)}, {vr(DG,4)}, {vr(BF+32+4*c,4)}, 0')
    a('s_mov_b32 s66, 4')
    a('L_a_cloop:')
    for buf in range(2):
        a(f'''v_subrev_u32 v{aA}, 64, v{aA}
              v_subrev_u32 v{aB}, 64, v{aB}
              v_subrev_u32 v{aB0}, 64, v{aB0}''')
        loadB(buf ^ 1)
        a('s_waitcnt vmcnt(8)')
        for i in range(7, -1, -1):
            for d in range(0, 8 - i):
                c = i + d
                a(f'v_mfma_f32_16x16x32_bf16 {vr(ACC+4*c,4)}, {vr(AF+4*i,4)}, {vr(BF+32*buf+4*d,4)}, {vr(ACC+4*c,4)}')
            a(f'buffer_load_dwordx4 {vr(AF+4*i,4)}, v{aA}, s[{SB}:{SB+3}], 0 offen offset:{64*(56-8*i)}')
    a('''s_sub_u32 s66, s66, 1
         s_cmp_lg_u32 s66, 0
         s_cbranch_scc1 L_a_cloop
         s_nop 7''')
    for c in range(8):
        x = ACC + 4 * c
        a(f'''v_permlane32_swap_b32 v{x}, v{x+2}
              v_permlane32_swap_b32 v{x+1}, v{x+3}
              v_cvt_pk_bf16_f32 v{x}, v{x}, v{x+2}
              v_cvt_pk_bf16_f32 v{x+1}, v{x+1}, v{x+3}
              buffer_store_dwordx2 {vr(x,2)}, v{aY}, s[{WS}:{WS+3}], s67 offen offset:{512*c}''')
    a('s_branch L_a_hend')
    a('''L_a_repack:
         s_cmp_eq_u32 s6, 3
         s_cbranch_scc0 L_a_hend''')
    a.srd(SA, 16, 663552)
    a(f'''s_mul_i32 s60, s4, 18
          s_mul_i32 s61, s5, 82944
          s_mul_i32 s62, s4, 2592
          s_add_u32 s61, s61, s62
          s_add_u32 s61, s61, {WS_WO}''')
    for m in range(3):
        a(f'''v_add_u32 v8, {64*m}, v0
              v_mul_u32_u24 v9, 7282, v8
              v_lshrrev_b32 v9, 16, v9
              v_mul_u32_u24 v10, 9, v9
              v_sub_u32 v10, v8, v10
              v_lshlrev_b32 v10, 4, v10
              v_add_u32 v9, s60, v9
              v_lshrrev_b32 v11, 4, v9
              v_mul_u32_u24 v11, 18, v11
              v_bfe_u32 v12, v9, 3, 1
              v_lshl_add_u32 v11, v12, 2, v11
              v_and_b32 v12, 1, v9
              v_lshl_add_u32 v11, v12, 3, v11
              v_bfe_u32 v13, v9, 1, 2
              v_add_u32 v11, v11, v13
              v_bfe_u32 v14, v9, 3, 3
              v_lshlrev_b32 v14, 2, v14
              v_lshl_add_u32 v14, v12, 1, v14
              v_lshrrev_b32 v12, 1, v13
              v_add_u32 v14, v14, v12
              v_mul_u32_u24 v14, 18, v14
              v_and_b32 v13, 1, v13
              v_add3_u32 v14, v14, v13, 16
              v_cmp_lt_u32 vcc, 511, v9
              v_lshlrev_b32 v{16+m}, 4, v8
              s_nop 0
              v_cndmask_b32 v11, v11, v14, vcc
              v_mul_u32_u24 v11, 1152, v11
              v_add3_u32 v11, v11, v10, s19
              v_cmp_gt_u32 vcc, 162, v8
              s_nop 1
              v_cndmask_b32 v11, v3, v11, vcc
              v_cndmask_b32 v{16+m}, v3, v{16+m}, vcc
              buffer_load_dwordx4 {vr(20+4*m,4)}, v11, s[{SA}:{SA+3}], 0 offen''')
    for m in range(3):
        a(f'''s_waitcnt vmcnt({2-m+m})
              buffer_store_dwordx4 {vr(20+4*m,4)}, v{16+m}, s[{WS}:{WS+3}], s61 offen''')
    a('L_a_hend:')
    a.stamp_out(0, WS)
    a('L_a_exit:\ns_endpgm')
    return a.text(), dict(name='ka_kernel', grid=256, block=768, lds=LDS, vgpr=168, sgpr=102)


def gen_kb():
    a = Asm()
    L_W = 0
    L_S = 82944
    L_FL = L_S + 4 * 6144
    LDS = L_FL + 64
    WS, SX, SO = 40, 44, 52
    a('kb_kernel:')
    a.stamp(0); a.stamp(5, True)
    a(f'''s_cmp_ge_u32 s2, 256
          s_cbranch_scc1 L_b_exit
          s_load_dwordx2 s[36:37], s[0:1], 112
          s_load_dwordx2 s[8:9], s[0:1], 0
          s_load_dwordx2 s[12:13], s[0:1], 96
          v_lshrrev_b32 v1, 6, v0
          v_and_b32 v0, 63, v0
          v_readfirstlane_b32 s3, v1
          v_mov_b32 v2, {L_FL}
          v_and_b32 v4, 15, v0
          v_lshl_add_u32 v5, v4, 2, v2
          v_mov_b32 v6, 0
          ds_write_b32 v5, v6
          s_and_b32 s4, s2, 7
          s_lshr_b32 s5, s2, 6
          s_lshl_b32 s5, s5, 3
          s_or_b32 s4, s4, s5
          s_lshr_b32 s5, s2, 3
          s_and_b32 s5, s5, 7
          s_and_b32 s6, s3, 3
          s_mul_i32 s18, s4, 73728
          s_mul_i32 s19, s5, 144
          v_lshlrev_b32 v1, 4, v0
          s_mul_i32 s60, s6, 18432
          s_add_u32 s18, s18, s60
          s_cmp_ge_u32 s3, 4
          s_cbranch_scc1 L_b_load''')
    OF = 96
    a(f'''s_add_u32 s60, s18, {WS_O}
          s_add_u32 s61, s60, 4096
          s_add_u32 s62, s60, 8192
          s_add_u32 s63, s60, 12288
          s_add_u32 s64, s60, 16384
          s_waitcnt lgkmcnt(0)''')
    a.srd(WS, 36, WS_SIZE)
    for ks in range(18):
        a(f'buffer_load_dwordx4 {vr(OF+4*ks,4)}, v1, s[{WS}:{WS+3}], s{60+ks//4} offen offset:{1024*(ks%4)}')
    a('s_barrier')
    a.srd(SX, 8, 2359296)
    a.srd(SO, 12, 2359296)
    a(f'''v_mov_b32 v3, {OOB}
          s_mul_i32 s65, s6, 6144
          s_add_u32 s65, s65, {L_S}
          s_mul_i32 s60, s5, {72*4096}
          s_lshl_b32 s61, s4, 7
          s_add_u32 s60, s60, s61
          s_lshl_b32 s61, s6, 5
          s_add_u32 s60, s60, s61
          s_add_u32 s60, s60, {WS_Y}''')
    XA = 84
    for m in range(3):
        a(f'''v_add_u32 v8, {64*m}, v0
              v_mul_u32_u24 v9, 7282, v8
              v_lshrrev_b32 v9, 16, v9
              v_mul_u32_u24 v10, 9, v9
              v_sub_u32 v10, v8, v10
              v_lshlrev_b32 v10, 4, v10
              v_mul_u32_u24 v9, 1152, v9
              v_add3_u32 v{XA+m}, v9, v10, s19
              v_lshrrev_b32 v9, 1, v8
              v_and_b32 v10, 1, v8
              v_lshlrev_b32 v10, 4, v10
              v_cmp_gt_u32 vcc, 144, v8
              v_lshl_add_u32 v9, v9, 12, v10
              s_add_u32 s61, s65, {1024*m}
              v_cndmask_b32 v{XA+m}, v3, v{XA+m}, vcc
              v_cndmask_b32 v9, v3, v9, vcc
              s_mov_b32 m0, s61
              s_add_u32 s61, s61, 3072
              buffer_load_dwordx4 v{XA+m}, s[{SX}:{SX+3}], s18 offen lds
              s_mov_b32 m0, s61
              s_nop 0
              buffer_load_dwordx4 v9, s[{WS}:{WS+3}], s60 offen lds''')
    GV = 87
    a(f'''s_lshl_b32 s60, s4, 8
          s_lshl_b32 s61, s6, 6
          s_add_u32 s60, s60, s61
          s_add_u32 s60, s60, {WS_G}
          v_lshlrev_b32 v11, 2, v4
          buffer_load_dword v{GV}, v11, s[{WS}:{WS+3}], s60 offen
          s_mov_b32 s60, 0''')
    addr_trW(a, 14, L_W, 60, 10, 11)
    a(f'''v_add_u32 v15, {9*4608}, v14
          v_mul_u32_u24 v88, 144, v4
          v_lshrrev_b32 v11, 4, v0
          v_lshl_add_u32 v88, v11, 3, v88
          v_add_u32 v88, s65, v88
          v_lshlrev_b32 v89, 3, v0
          v_add_u32 v89, s65, v89
          v_add_u32 v90, s65, v1''')
    a.stamp(1)

    def gateB(ks):
        if ks % 6 == 0:
            lds_wait(a, 2, 16 * (ks // 6), 4, 66)
            if ks == 0:
                a('s_waitcnt vmcnt(7)')
                a.stamp(2)
            return True
        return False
    gemm5(a, 32, 8, 64, lambda ks, x: ((14, ks * 4608 + 32 * x) if ks < 9 else (15, (ks - 9) * 4608 + 32 * x)),
          lambda ks: OF + 4 * ks, lambda ks: None, gateB, look=6)
    a.stamp(3)
    a('s_waitcnt vmcnt(0)')
    for x in range(5):
        a(f'ds_read_b64 {vr(20+2*x,2)}, v88 offset:{32*x}')
        a(f'ds_read_b64_tr_b16 {vr(32+2*x,2)}, v89 offset:{3072+512*x}')
    a(f'v_sub_f32 v91, 1.0, v{GV}')
    for x in range(5):
        acc = 64 + 4 * x
        a(f's_waitcnt lgkmcnt({8-2*x+(x if x else 0)})' if False else f's_waitcnt lgkmcnt({8-2*x+x})')
        for r in range(4):
            xs, ys = 20 + 2 * x + (r >> 1), 32 + 2 * x + (r >> 1)
            t = 8 + 2 * (r & 1)
            if r & 1:
                a(f'v_and_b32 v{t}, 0xffff0000, v{xs}')
                a(f'v_and_b32 v{t+1}, 0xffff0000, v{ys}')
            else:
                a(f'v_lshlrev_b32 v{t}, 16, v{xs}')
                a(f'v_lshlrev_b32 v{t+1}, 16, v{ys}')
            a(f'''v_mul_f32 v{t}, v{t}, v{t+1}
                  v_mul_f32 v{t}, v{t}, v91
                  v_fma_f32 v{acc+r}, v{GV}, v{acc+r}, v{t}''')
        a(f'''v_cvt_pk_bf16_f32 v{acc}, v{acc}, v{acc+1}
              v_cvt_pk_bf16_f32 v{acc+1}, v{acc+2}, v{acc+3}''')
        if x == 4:
            a(f'''v_cmp_gt_u32 vcc, 32, v0
                  s_and_saveexec_b64 s[62:63], vcc
                  ds_write_b64 v88, {vr(acc,2)} offset:{32*x}
                  s_mov_b64 exec, s[62:63]''')
        else:
            a(f'ds_write_b64 v88, {vr(acc,2)} offset:{32*x}')
    for m in range(3):
        a(f'ds_read_b128 {vr(20+4*m,4)}, v90 offset:{1024*m}')
    for m in range(3):
        a(f'''s_waitcnt lgkmcnt({2-m})
              buffer_store_dwordx4 {vr(20+4*m,4)}, v{XA+m}, s[{SO}:{SO+3}], s18 offen''')
    a.stamp(4)
    a.stamp_out(1, WS)
    a('s_endpgm')
    a('L_b_load:')
    a(f'''s_mul_i32 s62, s5, 82944
          s_add_u32 s62, s62, {WS_WO}
          s_lshl_b32 s63, s6, 10
          s_min_u32 s64, s6, 2
          s_lshl_b32 s64, s64, 10
          s_lshl_b32 s60, s6, 2
          v_add_u32 v19, s60, v2
          v_mov_b32 v18, 1
          s_waitcnt lgkmcnt(0)''')
    a.srd(WS, 36, WS_SIZE)
    a('s_barrier')

    def chunk(c):
        for m in range(7):
            a(f'''s_add_u32 s60, s{63 if m < 6 else 64}, {(27*c+4*m)*1024}
                  s_mov_b32 m0, s60
                  s_add_u32 s61, s60, s62
                  buffer_load_dwordx4 v1, s[{WS}:{WS+3}], s61 offen lds''')
    chunk(0); chunk(1)
    a('s_waitcnt vmcnt(7)\nds_write_b32 v19, v18')
    chunk(2)
    a('s_waitcnt vmcnt(7)\nds_write_b32 v19, v18 offset:16')
    a('s_waitcnt vmcnt(0)\nds_write_b32 v19, v18 offset:32')
    a.stamp_out(1, WS)
    a('L_b_exit:\ns_endpgm')
    return a.text(), dict(name='kb_kernel', grid=256, block=512, lds=LDS, vgpr=168, sgpr=102)


def main(out_path):
    ref = open(os.path.join(os.path.dirname(os.path.abspath(__file__)), '..', 'cdna_kernels', NAME + '.s.ref')).read()
    head = [l for l in ref.split('\n') if l.startswith(';') and '@launch' not in l and 'Override launch' not in l
            and 'grid=ceil' not in l]
    kernels = [gen_ka(), gen_kb()]
    s = '\n'.join(head) + '\n'
    for _, k in kernels:
        s += f"; @launch kernel={k['name']} grid=({k['grid']},1,1) block=({k['block']},1,1) lds={k['lds']}\n"
    s += '.amdgcn_target "amdgcn-amd-amdhsa--gfx950"\n.text\n'
    for t, k in kernels:
        s += f".globl {k['name']}\n.p2align 8\n.type {k['name']},@function\n" + t
    s += '.section .rodata,"a"\n'
    for _, k in kernels:
        s += f'''.p2align 6
.amdhsa_kernel {k['name']}
  .amdhsa_next_free_vgpr {k['vgpr']}
  .amdhsa_next_free_sgpr {k['sgpr']}
  .amdhsa_accum_offset {k['vgpr']}
  .amdhsa_group_segment_fixed_size 0
  .amdhsa_kernarg_size 120
  .amdhsa_user_sgpr_count 2
  .amdhsa_user_sgpr_kernarg_segment_ptr 1
  .amdhsa_system_sgpr_workgroup_id_x 1
.end_amdhsa_kernel
'''
    open(out_path, 'w').write(s)


if __name__ == '__main__':
    main(sys.argv[1] if len(sys.argv) > 1 else os.path.join(os.path.dirname(os.path.abspath(__file__)), '..', 'cdna_kernels', NAME + '.s'))
```

```python
import math, sys, os, struct

NAME = "gated_mix__grouped_kv_mqa__ssm_conv_h3__prompt"

WS_KV = 0
TILE_B = 2336
KV_BYTES = 64 * TILE_B
WS_FL = 0x30000
WS_G = 0x280000
WS_UR = 0x290000
UR_COPY = 4128
UR_CH = 8256
WS_O = 0x720000
WS_Y = 0x960000
WS_WO = 0x40000
WS_DBG = 0xC00000
WS_SIZE = 0x1000000
OOB = 0x7FFFFF00
SPIN = 20000
STAMPS = int(os.environ.get('STAMPS', '0'))
QSCALE = (18 ** -0.5) * math.log2(math.e)


def f32bits(x):
    return struct.unpack('<I', struct.pack('<f', x))[0]


def vr(a, n):
    return f'v[{a}:{a+n-1}]' if n > 1 else f'v{a}'


class Asm:
    def __init__(self):
        self.lines = []

    def __call__(self, s):
        for ln in s.split('\n'):
            ln = ln.strip()
            if ln:
                self.lines.append(('    ' + ln) if not ln.endswith(':') else ln)

    def srd(self, d, b, nbytes):
        self(f'''s_mov_b32 s{d}, s{b}
                 s_and_b32 s{d+1}, s{b+1}, 0xffff
                 s_mov_b32 s{d+2}, {nbytes}
                 s_mov_b32 s{d+3}, 0x00020000''')

    def dma_seq(self, n, vaddr, srd, s_src, d_src, s_lds, d_lds):
        for i in range(n):
            self(f'''s_mov_b32 m0, s{s_lds}
                     s_add_u32 s{s_lds}, s{s_lds}, {d_lds}
                     buffer_load_dwordx4 v{vaddr}, s[{srd}:{srd+3}], s{s_src} offen lds
                     s_add_u32 s{s_src}, s{s_src}, {d_src}''')

    def stamp(self, i, real=False):
        if not STAMPS:
            return
        op = 's_memrealtime' if real else 's_memtime'
        self(f'''s_waitcnt lgkmcnt(0)
                 {op} s[{84+2*i}:{85+2*i}]
                 s_waitcnt lgkmcnt(0)''')

    def stamp_out(self, kidx, ws):
        if not STAMPS:
            return
        self('s_waitcnt vmcnt(0)')
        self.stamp(7); self.stamp(6, True)
        self(f'''s_lshl_b32 s82, s2, 4
                 s_add_u32 s82, s82, s3
                 s_lshl_b32 s82, s82, 5
                 s_add_u32 s82, s82, {WS_DBG + kidx*256*16*32}
                 v_mov_b32 v8, s84
                 v_mov_b32 v9, s86
                 v_mov_b32 v10, s88
                 v_mov_b32 v11, s90
                 v_mov_b32 v12, s92
                 v_mov_b32 v13, s94
                 v_mov_b32 v14, s96
                 v_mov_b32 v15, s98
                 v_mov_b32 v7, 0
                 buffer_store_dwordx4 v[8:11], v7, s[{ws}:{ws+3}], s82 offen
                 buffer_store_dwordx4 v[12:15], v7, s[{ws}:{ws+3}], s82 offen offset:16''')

    def text(self):
        return '\n'.join(self.lines) + '\n'


def gemm(a, kss, nA, R, offB, offA, depth, swapped=False, first_ks=0):
    nrd = 1 + 2 * nA
    nb = depth

    def reads(i):
        ks = kss[i]
        buf = i % nb
        reg, imm = offB(ks)
        a(f'ds_read_b128 {vr(R["B"][buf], 4)}, v{reg} offset:{imm}')
        for x in range(nA):
            d = R['A'][buf] + 4 * x
            reg, imm, dl = offA(ks, x)
            a(f'ds_read_b64_tr_b16 {vr(d, 2)}, v{reg} offset:{imm}')
            a(f'ds_read_b64_tr_b16 {vr(d+2, 2)}, v{reg} offset:{imm+dl}')

    n = len(kss)
    for i in range(min(nb - 1, n)):
        reads(i)
    for i, ks in enumerate(kss):
        buf = i % nb
        if i + nb - 1 < n:
            reads(i + nb - 1)
        later = min(n - 1, i + nb - 1) - i
        a(f's_waitcnt lgkmcnt({later*nrd})')
        for x in range(nA):
            acc = R['acc'] + 4 * x
            cin = '0' if ks == first_ks else vr(acc, 4)
            a(f'v_mfma_f32_16x16x32_bf16 {vr(acc,4)}, {vr(R["A"][buf]+4*x,4)}, {vr(R["B"][buf],4)}, {cin}')
            if swapped:
                acc = R['acc2']
                cin = '0' if ks == first_ks else vr(acc, 4)
                a(f'v_mfma_f32_16x16x32_bf16 {vr(acc,4)}, {vr(R["B"][buf],4)}, {vr(R["A"][buf]+4*x,4)}, {cin}')


def gemm5(a, Aring, nring, acc, offA, Breg, offB, gate, look=5):
    steps = [(ks, x) for ks in range(18) for x in range(5)]
    fifo = []
    need = {}

    def issue(si):
        ks, x = steps[si]
        if x == 0:
            if gate(ks):
                fifo.clear()
            ob = offB(ks)
            if ob is not None:
                a(f'ds_read_b128 {vr(Breg(ks), 4)}, v{ob[0]} offset:{ob[1]}')
                fifo.append(('b', ks))
        d = Aring + 4 * (si % nring)
        reg, imm = offA(ks, x)
        a(f'ds_read_b64_tr_b16 {vr(d, 2)}, v{reg} offset:{imm}')
        a(f'ds_read_b64_tr_b16 {vr(d+2, 2)}, v{reg} offset:{imm+144}')
        fifo.append(('a0', si)); fifo.append(('a1', si))

    assert look < nring
    for si in range(look):
        issue(si)
    for si, (ks, x) in enumerate(steps):
        if si + look < len(steps):
            issue(si + look)
        if ('a1', si) in fifo:
            later = len(fifo) - 1 - fifo.index(('a1', si))
            assert later <= 15
            a(f's_waitcnt lgkmcnt({later})')
            del fifo[:len(fifo) - later]
        c = acc + 4 * x
        cin = '0' if ks == 0 else vr(c, 4)
        a(f'v_mfma_f32_16x16x32_bf16 {vr(c,4)}, {vr(Aring+4*(si%nring),4)}, {vr(Breg(ks),4)}, {cin}')


_uid = [0]


def lds_wait(a, vaddr, imm, t, s_cnt, n=4):
    _uid[0] += 1
    L = f'L_lw{_uid[0]}'
    a(f's_mov_b32 s{s_cnt}, {SPIN*8}')
    a(f'{L}:')
    if n == 4:
        a(f'''ds_read_b128 {vr(t,4)}, v{vaddr} offset:{imm}
              s_waitcnt lgkmcnt(0)
              v_and_b32 v{t}, v{t}, v{t+1}
              v_and_b32 v{t+2}, v{t+2}, v{t+3}
              v_and_b32 v{t}, v{t}, v{t+2}''')
    else:
        a(f'''ds_read_b32 v{t}, v{vaddr} offset:{imm}
              s_waitcnt lgkmcnt(0)''')
    a(f'''v_cmp_ne_u32 vcc, 1, v{t}
          s_cbranch_vccz {L}_ok
          s_sub_u32 s{s_cnt}, s{s_cnt}, 1
          s_cmp_lg_u32 s{s_cnt}, 0
          s_cbranch_scc1 {L}
          {L}_ok:''')


def addr_wstream(a, dst, s_stream, t0, t1, t2, s_tmp):
    a(f'''s_lshl_b32 s{s_tmp}, {s_stream}, 6
          v_add_u32 v{t0}, s{s_tmp}, v0
          v_mul_u32_u24 v{t1}, 7282, v{t0}
          v_lshrrev_b32 v{t1}, 16, v{t1}
          v_mul_u32_u24 v{dst}, 9, v{t1}
          v_sub_u32 v{t0}, v{t0}, v{dst}
          v_lshlrev_b32 v{t0}, 4, v{t0}
          v_and_b32 v{dst}, 56, v{t1}
          v_and_b32 v{t2}, 1, v{t1}
          v_lshl_add_u32 v{dst}, v{t2}, 2, v{dst}
          v_bfe_u32 v{t2}, v{t1}, 1, 2
          v_add_u32 v{dst}, v{dst}, v{t2}
          v_mul_u32_u24 v{dst}, 1152, v{dst}
          v_add3_u32 v{dst}, v{dst}, v{t0}, s19''')


def addr_trW(a, dst, base_imm, s_add, t0, t1):
    a(f'''v_lshrrev_b32 v{t0}, 4, v0
          v_lshlrev_b32 v{t0}, 3, v{t0}
          v_bfe_u32 v{t1}, v0, 2, 2
          v_lshl_add_u32 v{t0}, v{t1}, 1, v{t0}
          v_mul_u32_u24 v{t0}, 144, v{t0}
          v_and_b32 v{t1}, 3, v0
          v_lshl_add_u32 v{t0}, v{t1}, 3, v{t0}
          v_add_u32 v{t0}, {base_imm}, v{t0}
          v_add_u32 v{dst}, s{s_add}, v{t0}''')


def addr_xfrag(a, dst, vn, vg, t0, s_tmp):
    a(f'''v_and_b32 v{vn}, 15, v0
          v_lshrrev_b32 v{t0}, 2, v{vn}
          v_sub_u32 v{t0}, 0, v{t0}
          v_lshrrev_b32 v{vg}, 4, v0
          v_xor_b32 v{t0}, v{t0}, v{vg}
          v_and_b32 v{t0}, 3, v{t0}
          v_lshlrev_b32 v{t0}, 4, v{t0}
          v_lshl_add_u32 v{dst}, v{vn}, 6, v{t0}
          s_mul_i32 s{s_tmp}, s6, 18432
          v_add_u32 v{dst}, s{s_tmp}, v{dst}''')


def addr_qx(a, d, col_imm, v_col0, v_n, s_base, t0, t1, t2):
    a(f'''v_add_u32 v{t0}, {col_imm}, v{v_col0}
          v_mul_u32_u24 v{t1}, 3641, v{t0}
          v_lshrrev_b32 v{t1}, 16, v{t1}
          v_mul_u32_u24 v{t2}, 18, v{t1}
          v_sub_u32 v{t2}, v{t0}, v{t2}
          v_mul_u32_u24 v{t1}, 576, v{t1}
          v_lshrrev_b32 v{t0}, 3, v{t2}
          v_lshl_add_u32 v{t0}, v{t0}, 4, v{v_n}
          v_lshlrev_b32 v{t0}, 4, v{t0}
          v_and_b32 v{d}, 7, v{t2}
          v_lshl_add_u32 v{t0}, v{d}, 1, v{t0}
          v_cmp_gt_u32 vcc, 16, v{t2}
          v_lshlrev_b32 v{d}, 2, v{v_n}
          v_add_u32 v{d}, 512, v{d}
          v_cndmask_b32 v{d}, v{d}, v{t0}, vcc
          v_add3_u32 v{d}, v{d}, v{t1}, s{s_base}''')


def gen_ka():
    a = Asm()
    L_W = 73728
    L_WC = 154496
    L_FL = 163712
    LDS = 163840
    WS, SA, SB, SC, SD = 40, 44, 48, 52, 56
    a('ka_kernel:')
    a.stamp(0); a.stamp(5, True)
    a(f'''s_cmp_ge_u32 s2, 256
          s_cbranch_scc1 L_a_exit
          s_load_dwordx8 s[8:15], s[0:1], 0
          s_load_dwordx2 s[36:37], s[0:1], 112
          s_load_dwordx8 s[28:35], s[0:1], 80
          s_load_dwordx2 s[16:17], s[0:1], 32
          s_load_dwordx8 s[20:27], s[0:1], 48
          v_lshrrev_b32 v1, 6, v0
          v_and_b32 v0, 63, v0
          v_readfirstlane_b32 s3, v1
          v_mov_b32 v2, {L_FL}
          v_and_b32 v4, 31, v0
          v_lshl_add_u32 v4, v4, 2, v2
          v_mov_b32 v5, 0
          ds_write_b32 v4, v5
          s_and_b32 s4, s2, 7
          s_lshr_b32 s5, s2, 6
          s_lshl_b32 s5, s5, 3
          s_or_b32 s4, s4, s5
          s_lshr_b32 s5, s2, 3
          s_and_b32 s5, s5, 7
          s_and_b32 s6, s3, 3
          s_lshr_b32 s7, s3, 2
          s_mul_i32 s18, s4, 73728
          s_mul_i32 s19, s5, 144
          v_mov_b32 v3, {OOB}
          v_lshlrev_b32 v1, 4, v0
          s_lshl_b32 s39, s6, 2
          v_add_u32 v19, s39, v2
          v_mov_b32 v18, 1
          s_cmp_eq_u32 s7, 2
          s_cbranch_scc1 L_a_helper
          s_cmp_eq_u32 s7, 1
          s_cbranch_scc1 L_a_cons''')

    addr_wstream(a, 7, 's6', 10, 11, 12, 60)
    a('s_add_u32 s61, s6, 4')
    addr_wstream(a, 8, 's61', 10, 11, 12, 60)
    addr_wstream(a, 9, '8', 10, 11, 12, 60)
    a(f'''s_lshl_b32 s62, s6, 10
          s_add_u32 s62, s62, {L_W}
          s_cmp_eq_u32 s6, 3
          s_cselect_b32 s63, 0, s6
          s_and_b32 s64, s6, 1
          s_waitcnt lgkmcnt(0)
          s_barrier''')
    a.srd(SB, 10, 663552)
    a.srd(WS, 36, WS_SIZE)

    def wpiece(vaddr, e, lds_add):
        a(f'''s_add_u32 s60, s62, {e*9216 + lds_add}
              s_mov_b32 m0, s60
              s_mov_b32 s61, {e*73728}
              buffer_load_dwordx4 v{vaddr}, s[{SB}:{SB+3}], s61 offen lds''')

    def wpiece8(s_e, e0):
        a(f'''s_add_u32 s61, s{s_e}, {e0}
              s_mul_i32 s60, s61, 9216
              s_add_u32 s60, s60, {L_W + 8192}
              s_mov_b32 m0, s60
              s_mul_i32 s61, s61, 73728
              buffer_load_dwordx4 v9, s[{SB}:{SB+3}], s61 offen lds''')

    for c in range(2):
        for e in range(3 * c, 3 * c + 3):
            wpiece(7, e, 0); wpiece(8, e, 4096)
        wpiece8(63, 3 * c)
    a('''s_waitcnt vmcnt(7)
         ds_write_b32 v19, v18''')
    for e in (6, 7):
        wpiece(7, e, 0); wpiece(8, e, 4096)
    wpiece8(64, 6)
    a(f'''s_mov_b32 s61, {8*73728}
          buffer_load_dwordx4 v[20:23], v7, s[{SB}:{SB+3}], s61 offen
          buffer_load_dwordx4 v[24:27], v8, s[{SB}:{SB+3}], s61 offen
          buffer_load_dwordx4 v[28:31], v9, s[{SB}:{SB+3}], s61 offen
          v_add_u32 v10, s62, v1
          v_add_u32 v10, {8*9216}, v10
          v_add_u32 v11, {L_W + 80*1024}, v1
          s_waitcnt vmcnt(8)
          ds_write_b32 v19, v18 offset:16''')
    lds_wait(a, 2, 64, 32, 66)
    a('''s_waitcnt vmcnt(0)
         ds_write_b128 v10, v[20:23]
         ds_write_b128 v10, v[24:27] offset:4096
         ds_write_b128 v11, v[28:31]
         s_waitcnt lgkmcnt(0)
         ds_write_b32 v19, v18 offset:32''')
    a.stamp(1)
    a('s_branch L_a_b3a')

    a('L_a_cons:')
    a('s_mov_b32 s60, 0')
    addr_trW(a, 14, L_W, 60, 10, 11)
    a(f'v_add_u32 v15, {9*4608}, v14')
    addr_xfrag(a, 16, 10, 12, 11, 60)
    a('''v_lshlrev_b32 v12, 2, v12
         s_waitcnt lgkmcnt(0)''')
    a.srd(WS, 36, WS_SIZE)
    a.srd(SD, 34, 256)
    a(f'''s_cmp_lt_u32 s2, 8
          s_cbranch_scc0 L_a_noclr
          s_cmp_eq_u32 s6, 0
          s_cbranch_scc0 L_a_noclr
          v_lshrrev_b32 v20, 1, v0
          v_lshlrev_b32 v20, 7, v20
          v_and_b32 v21, 1, v0
          v_lshl_add_u32 v20, v21, 4, v20
          s_lshl_b32 s64, s2, 12
          s_add_u32 s64, s64, {WS_FL}
          v_mov_b32 v24, 0
          v_mov_b32 v25, 0
          v_mov_b32 v26, 0
          v_mov_b32 v27, 0
          buffer_store_dwordx4 v[24:27], v20, s[{WS}:{WS+3}], s64 offen sc1
          v_cmp_eq_u32 vcc, 0, v0
          s_lshl_b32 s64, s2, 2
          s_nop 0
          v_cndmask_b32 v20, v3, v24, vcc
          s_barrier
          s_waitcnt vmcnt(0)
          buffer_store_dword v18, v20, s[{SD}:{SD+3}], s64 offen sc1
          s_branch L_a_clrd
          L_a_noclr:
          s_barrier
          L_a_clrd:''')
    QAD = 84
    for x in range(5):
        for pr in range(2):
            addr_qx(a, QAD + 2 * x + pr, 16 * x + 2 * pr, 12, 10, 60, 9, 11, 13)
    lds_wait(a, 19, 48, 4, 66, n=1)
    a.stamp(1)

    def gateA(ks):
        if ks % 6 == 0:
            lds_wait(a, 2, 16 * (ks // 6), 4, 66)
            return True
        return False
    gemm5(a, 32, 8, 64, lambda ks, x: ((14, ks * 4608 + 32 * x) if ks < 9 else (15, (ks - 9) * 4608 + 32 * x)),
          lambda ks: 20 + 4 * (ks % 3), lambda ks: (16, ks * 1024), gateA)
    lds_wait(a, 19, 64, 4, 66, n=1)
    a(f's_mov_b32 s60, {f32bits(QSCALE)}')
    for x in range(5):
        acc = 64 + 4 * x
        for r in range(4):
            a(f'v_mul_f32 v{acc+r}, s60, v{acc+r}')
        a(f'v_cvt_pk_bf16_f32 v{acc}, v{acc}, v{acc+1}')
        a(f'v_cvt_pk_bf16_f32 v{acc+1}, v{acc+2}, v{acc+3}')
        a(f'ds_write_b32 v{QAD+2*x}, v{acc}')
        a(f'ds_write_b32 v{QAD+2*x+1}, v{acc+1}')
    a('L_a_b3a:')
    a.stamp(2)
    a('s_waitcnt lgkmcnt(0)\ns_barrier')

    QA1, QA2, QB1, QB2 = 4, 8, 12, 10
    K1 = [16, 20]
    K2 = [24, 26]
    VA, VB = 28, 32
    IDX, aK1, aK2, aV = 36, 37, 38, 39
    NMA, NMB = 40, 41
    T0 = 42
    S = [48, 64, 80, 96]
    OA, OB = 112, 128
    a(f'''s_mul_i32 s60, s6, 576
          v_bfe_u32 v{T0}, v0, 4, 1
          v_mul_u32_u24 v{T0}, 18432, v{T0}
          v_add_u32 v{T0}, s60, v{T0}
          v_and_b32 v{T0+2}, 15, v0
          v_lshl_add_u32 v{T0+1}, v{T0+2}, 2, v{T0}
          v_lshl_add_u32 v{T0}, v{T0+2}, 4, v{T0}
          v_lshrrev_b32 v{T0+3}, 5, v0
          v_lshl_add_u32 v{T0}, v{T0+3}, 8, v{T0}
          ds_read_b128 {vr(QA1,4)}, v{T0}
          ds_read_b128 {vr(QB1,4)}, v{T0} offset:36864
          ds_read_b32 v{QA2}, v{T0+1} offset:512
          ds_read_b32 v{QB2}, v{T0+1} offset:{36864+512}
          v_and_b32 v{T0+2}, 31, v0
          v_lshlrev_b32 v{aK2}, 2, v{T0+2}
          v_mov_b32 v{IDX}, 0xdddd
          v_mov_b32 v{K2[0]+1}, 0x3f80
          v_mov_b32 v{K2[1]+1}, 0x3f80
          v_mov_b32 v{QA2+1}, 0
          v_mov_b32 v{QB2+1}, 0
          s_mul_i32 s61, s7, {32*TILE_B}
          v_add_u32 v{aK1}, s61, v1
          v_add_u32 v{aK2}, s61, v{aK2}
          v_mul_u32_u24 v{T0+1}, 288, v{T0+3}
          v_lshl_add_u32 v{T0+1}, v{T0+2}, 4, v{T0+1}
          v_cmp_gt_u32 vcc, 18, v{T0+2}
          v_mov_b32 v{T0+2}, 576
          s_lshl_b32 s64, s5, 2
          v_cndmask_b32 v{aV}, v{T0+2}, v{T0+1}, vcc
          v_add_u32 v{aV}, s61, v{aV}
          s_add_u32 s64, s64, s6
          v_cmp_gt_u32 vcc, 32, v0
          s_mov_b32 s65, 0
          s_lshl_b32 s60, s3, 10
          s_waitcnt lgkmcnt(0)
          v_cndmask_b32 v{QA2}, 0, v{QA2}, vcc
          v_cndmask_b32 v{QB2}, 0, v{QB2}, vcc
          s_barrier''')
    a.stamp(3)
    for add in (0, 73, 8, 81):
        a(f'''s_add_u32 s61, s60, {add*1024}
              s_mov_b32 m0, s61
              s_nop 0
              buffer_load_dwordx4 v1, s[{WS}:{WS+3}], s61 offen lds''')
    a('''s_waitcnt vmcnt(0)
         s_barrier''')
    a.stamp(4)

    def qk1(dst, kb, q1):
        a(f'v_mfma_f32_32x32x16_bf16 {vr(dst,16)}, {vr(K1[kb],4)}, {vr(q1,4)}, 0')

    def qk2(dst, kb, q2):
        a(f'v_mfma_f32_32x32x8_bf16 {vr(dst,16)}, {vr(K2[kb],2)}, {vr(q2,2)}, {vr(dst,16)}')

    def pv(o, v, p):
        a(f'v_smfmac_f32_32x32x32_bf16 {vr(o,16)}, {vr(v,4)}, {vr(p,8)}, v{IDX}')

    def rdK(kb, tile):
        a(f'ds_read_b128 {vr(K1[kb],4)}, v{aK1} offset:{tile*TILE_B}')
        a(f'ds_read_b32 v{K2[kb]}, v{aK2} offset:{tile*TILE_B+1024}')

    def rdV(reg, tile, half):
        a(f'ds_read_b128 {vr(reg,4)}, v{aV} offset:{tile*TILE_B+1152+592*half}')

    def maxtree(dst, s, init=None):
        if init is None:
            a(f'v_max3_f32 v{dst}, v{s}, v{s+1}, v{s+2}')
            rest = list(range(3, 16))
        else:
            rest = list(range(0, 16))
        while len(rest) >= 2:
            a(f'v_max3_f32 v{dst}, v{dst}, v{s+rest[0]}, v{s+rest[1]}')
            rest = rest[2:]
        if rest:
            a(f'v_max_f32 v{dst}, v{dst}, v{s+rest[0]}')

    def set_bias():
        for nm, q2, t in ((NMA, QA2, T0), (NMB, QB2, T0 + 1)):
            a(f'v_mov_b32 v{t}, v{nm}')
        a('s_nop 1')
        for nm, q2, t in ((NMA, QA2, T0), (NMB, QB2, T0 + 1)):
            a(f'v_permlane32_swap_b32 v{nm}, v{t}')
        a('v_cmp_gt_u32 vcc, 32, v0')
        for nm, q2, t in ((NMA, QA2, T0), (NMB, QB2, T0 + 1)):
            a(f'''v_max_f32 v{nm}, v{nm}, v{t}
                  v_cvt_pk_bf16_f32 v{t}, -v{nm}, 0
                  v_lshlrev_b32 v{nm}, 16, v{t}
                  v_cndmask_b32 v{q2+1}, 0, v{t}, vcc''')

    def zero_state():
        for i in range(16):
            a(f'v_mov_b32 v{OA+i}, 0')
            a(f'v_mov_b32 v{OB+i}, 0')
        for i in range(8, 16):
            a(f'v_mov_b32 v{S[3]+i}, 0')
        for i in range(4):
            a(f'v_mov_b32 v{VB+i}, 0')

    rdK(0, 0)
    a('s_waitcnt lgkmcnt(0)')
    qk1(S[0], 0, QA1); qk2(S[0], 0, QA2)
    qk1(S[1], 0, QB1); qk2(S[1], 0, QB2)
    zero_state()
    maxtree(NMA, S[0])
    maxtree(NMB, S[1])
    set_bias()
    a('L_a_restart:')
    rdK(0, 0)
    rdK(1, 1)
    rdV(VA, 0, 0)
    a('s_waitcnt lgkmcnt(3)')
    qk1(S[0], 0, QA1); qk2(S[0], 0, QA2)
    a('s_mov_b32 s66, 16')
    a('s_nop 10')
    a('.p2align 6')
    a('L_a_loop:')

    def exps(buf, lo):
        for i in range(lo, lo + 4):
            a(f'v_exp_f32 v{S[buf]+i}, v{S[buf]+i}')

    for tl in range(2):
        kb = tl & 1
        cur, nxt, prv = 2 * tl, 2 * tl + 1, (2 * tl + 3) % 4
        qk1(S[nxt], kb, QB1)
        exps(cur, 0)
        qk2(S[nxt], kb, QB2)
        exps(cur, 4)
        pv(OB, VB, S[prv] + 8)
        rdV(VB, tl, 1)
        exps(cur, 8)
        a('s_waitcnt lgkmcnt(1)')
        pv(OA, VA, S[cur])
        exps(cur, 12)
        cur, nxt, prv = 2 * tl + 1, (2 * tl + 2) % 4, 2 * tl
        qk1(S[nxt], kb ^ 1, QA1)
        exps(cur, 0)
        qk2(S[nxt], kb ^ 1, QA2)
        rdK(kb, tl + 2)
        exps(cur, 4)
        a('s_waitcnt lgkmcnt(2)')
        pv(OA, VB, S[prv] + 8)
        exps(cur, 8)
        pv(OB, VA, S[cur])
        rdV(VA, tl + 1, 0)
        exps(cur, 12)
    a(f'''v_add_u32 v{aK1}, {2*TILE_B}, v{aK1}
          v_add_u32 v{aK2}, {2*TILE_B}, v{aK2}
          v_add_u32 v{aV}, {2*TILE_B}, v{aV}
          s_add_u32 s67, s66, s65
          s_cmp_eq_u32 s67, 15
          s_cbranch_scc0 L_a_nobar
          s_barrier
          L_a_nobar:
          s_sub_u32 s66, s66, 1
          s_cmp_lg_u32 s66, 0
          s_cbranch_scc1 L_a_loop''')
    pv(OB, VB, S[3] + 8)
    a(f'''v_subrev_u32 v{aK1}, {32*TILE_B}, v{aK1}
          v_subrev_u32 v{aK2}, {32*TILE_B}, v{aK2}
          v_subrev_u32 v{aV}, {32*TILE_B}, v{aV}
          s_waitcnt lgkmcnt(0)
          s_nop 9''')
    a(f'''s_cmp_eq_u32 s65, 0
          s_cbranch_scc0 L_a_ok
          v_add_f32 v{T0}, |v{OA}|, |v{OB}|''')
    for i in range(1, 10):
        a(f'v_add_f32 v{T0}, v{T0}, |v{OA+i}|')
        a(f'v_add_f32 v{T0}, v{T0}, |v{OB+i}|')
    a(f'''v_mov_b32 v{T0+2}, 0x7e800000
          v_cmp_nlt_f32 vcc, v{T0}, v{T0+2}
          v_mov_b32 v{T0+2}, 0x4f800000
          v_cmp_nlt_f32 s[68:69], v{OA+12}, v{T0+2}
          v_cmp_nlt_f32 s[70:71], v{OB+12}, v{T0+2}
          s_or_b64 vcc, vcc, s[68:69]
          s_or_b64 vcc, vcc, s[70:71]
          s_cbranch_vccz L_a_ok
          s_mov_b32 s65, 64
          v_mov_b32 v{QA2+1}, 0
          v_mov_b32 v{QB2+1}, 0
          v_mov_b32 v{NMA}, 0xff800000
          v_mov_b32 v{NMB}, 0xff800000
          s_mov_b32 s66, 32
          L_a_mloop:''')
    rdK(0, 0)
    a(f'''v_add_u32 v{aK1}, {TILE_B}, v{aK1}
          v_add_u32 v{aK2}, {TILE_B}, v{aK2}
          s_waitcnt lgkmcnt(0)''')
    qk1(S[0], 0, QA1); qk2(S[0], 0, QA2)
    qk1(S[1], 0, QB1); qk2(S[1], 0, QB2)
    a('s_nop 11')
    maxtree(NMA, S[0], init=True)
    maxtree(NMB, S[1], init=True)
    a(f'''s_sub_u32 s66, s66, 1
          s_cmp_lg_u32 s66, 0
          s_cbranch_scc1 L_a_mloop
          v_subrev_u32 v{aK1}, {32*TILE_B}, v{aK1}
          v_subrev_u32 v{aK2}, {32*TILE_B}, v{aK2}''')
    set_bias()
    zero_state()
    a('s_branch L_a_restart')
    a('L_a_ok:')
    a(f'''s_mul_i32 s60, s3, 3072
          s_xor_b32 s61, s3, 4
          s_mul_i32 s61, s61, 3072
          v_add_u32 v{T0}, s60, v1
          v_add_u32 v{T0+1}, s61, v1
          s_cmp_eq_u32 s7, 0
          s_cbranch_scc1 L_a_x0''')
    for i in list(range(10)) + [12]:
        a(f'v_swap_b32 v{OA+i}, v{OB+i}')
    a(f'v_swap_b32 v{NMA}, v{NMB}')
    a('L_a_x0:')
    a(f'''v_mov_b32 v{OB+10}, v{OB+12}
          v_mov_b32 v{OB+11}, v{NMB}
          s_lshl_b32 s60, s4, 2
          s_lshl_b32 s61, s7, 1
          s_add_u32 s60, s60, s61
          s_mul_i32 s60, s60, 18432
          s_add_u32 s60, s60, {WS_O}
          s_lshr_b32 s61, s64, 1
          s_lshl_b32 s61, s61, 10
          s_and_b32 s62, s64, 1
          s_lshl_b32 s62, s62, 9
          s_add_u32 s61, s61, s62
          s_add_u32 s61, s61, s60
          v_bfe_u32 v{T0+2}, v0, 4, 1
          v_mul_u32_u24 v{T0+2}, 18432, v{T0+2}
          v_and_b32 v{T0+3}, 15, v0
          v_lshl_add_u32 v{T0+2}, v{T0+3}, 4, v{T0+2}
          v_lshrrev_b32 v{T0+3}, 5, v0
          v_lshl_add_u32 v{T0+3}, v{T0+3}, 8, v{T0+2}
          v_cmp_gt_u32 vcc, 32, v0
          s_lshr_b32 s62, s64, 4
          s_add_u32 s62, s62, 16
          s_lshl_b32 s62, s62, 10
          v_cndmask_b32 v{T0+2}, v3, v{T0+2}, vcc
          s_bfe_u32 s63, s64, 0x20002
          s_lshl_b32 s63, s63, 8
          s_add_u32 s62, s62, s63
          s_and_b32 s63, s64, 3
          s_lshl_b32 s63, s63, 2
          s_add_u32 s62, s62, s63
          s_add_u32 s62, s62, s60
          s_barrier
          ds_write_b128 v{T0}, {vr(OB,4)}
          ds_write_b128 v{T0}, {vr(OB+4,4)} offset:1024
          ds_write_b128 v{T0}, {vr(OB+8,4)} offset:2048
          s_waitcnt lgkmcnt(0)
          s_barrier
          ds_read_b128 {vr(OB+8,4)}, v{T0+1} offset:2048
          ds_read_b128 {vr(OB,4)}, v{T0+1}
          ds_read_b128 {vr(OB+4,4)}, v{T0+1} offset:1024
          s_waitcnt lgkmcnt(2)
          v_min_f32 v{T0}, v{NMA}, v{OB+11}
          v_sub_f32 v{T0+1}, v{T0}, v{NMA}
          v_sub_f32 v{T0}, v{T0}, v{OB+11}
          v_exp_f32 v{T0+1}, v{T0+1}
          v_exp_f32 v{T0}, v{T0}
          s_nop 0
          v_mul_f32 v{T0+4}, v{T0+1}, v{OA+12}
          v_fmac_f32 v{T0+4}, v{T0}, v{OB+10}
          v_rcp_f32 v{T0+4}, v{T0+4}
          s_nop 0
          v_mul_f32 v{T0+1}, v{T0+1}, v{T0+4}
          v_mul_f32 v{T0}, v{T0}, v{T0+4}
          s_waitcnt lgkmcnt(0)''')
    for i in range(10):
        a(f'v_mul_f32 v{OA+i}, v{OA+i}, v{T0+1}')
        a(f'v_fmac_f32 v{OA+i}, v{OB+i}, v{T0}')
    for i in range(5):
        a(f'v_cvt_pk_bf16_f32 v{S[0]+i}, v{OA+2*i}, v{OA+2*i+1}')
    a(f'''buffer_store_dwordx4 {vr(S[0],4)}, v{T0+3}, s[{WS}:{WS+3}], s61 offen
          buffer_store_dword v{S[0]+4}, v{T0+2}, s[{WS}:{WS+3}], s62 offen''')
    a.stamp_out(0, WS)
    a('s_endpgm')

    a('L_a_helper:')
    a(f'''s_setprio 3
          s_cmp_ge_u32 s5, 3
          s_cselect_b32 s61, 3, 0
          s_sub_u32 s60, s5, s61
          s_lshl_b32 s61, s60, 4
          s_cmp_eq_u32 s60, 2
          s_cselect_b32 s61, 20, s61
          v_mul_u32_u24 v9, 36, v0
          v_add_u32 v9, s61, v9
          v_lshrrev_b32 v6, 2, v0
          v_lshrrev_b32 v8, 4, v0
          v_sub_u32 v8, 0, v8
          v_xor_b32 v8, v8, v0
          v_and_b32 v8, 3, v8
          v_lshlrev_b32 v8, 4, v8
          v_mul_u32_u24 v6, 1152, v6
          v_add_u32 v6, v6, v8
          s_mul_i32 s61, s6, 18432
          s_add_u32 s60, s61, s18
          s_mov_b32 s62, 0
          s_mov_b32 s63, {L_WC}
          s_waitcnt lgkmcnt(0)''')
    a.srd(SB, 8, 2359296)
    a.dma_seq(18, 6, SB, 60, 64, 61, 1024)
    a('s_barrier')
    a(f'''s_cmp_lt_u32 s5, 3
          s_cselect_b32 s{SC}, s12, s14
          s_cselect_b32 s{SC+1}, s13, s15
          s_and_b32 s{SC+1}, s{SC+1}, 0xffff
          s_mov_b32 s{SC+2}, 20736
          s_mov_b32 s{SC+3}, 0x00020000''')
    a.srd(SA, 30, 1152)
    a.srd(WS, 36, WS_SIZE)
    a.srd(SD, 34, 256)
    a('''s_cmp_lt_u32 s5, 6
         s_cbranch_scc0 L_a_nowc''')
    a.dma_seq(9, 9, SC, 62, 2304, 63, 1024)
    a('''s_branch L_a_wcd
         L_a_nowc:
         v_lshlrev_b32 v11, 1, v0''')
    for m in range(9):
        a(f'buffer_load_ushort v{20+m}, v11, s[{SA}:{SA+3}], 0 offen offset:{128*m}')
    a(f'''v_add_u32 v10, {L_WC}, v1
          s_waitcnt vmcnt(0)''')
    for m in range(9):
        a(f'ds_write_b16 v10, v{20+m} offset:{1024*m}')
    a('L_a_wcd:')
    RH = dict(B=[20, 24, 28, 32, 36], A=[40, 44, 48, 52, 56], acc=64, acc2=68)
    a(f'''v_lshrrev_b32 v15, 4, v0
          v_lshlrev_b32 v15, 3, v15
          v_bfe_u32 v16, v0, 2, 2
          v_add_u32 v15, v15, v16
          v_and_b32 v16, 1, v0
          v_lshlrev_b32 v16, 3, v16
          v_lshl_add_u32 v17, v15, 4, v16
          v_add_u32 v17, {L_WC}, v17''')
    addr_xfrag(a, 16, 4, 5, 15, 60)
    a(f'''s_and_b32 s60, s6, 1
          s_lshl_b32 s60, s60, 4
          v_add_u32 v6, s60, v4
          s_lshl_b32 s64, s4, 1
          s_lshr_b32 s60, s6, 1
          s_add_u32 s64, s64, s60
          s_mul_i32 s64, s64, {TILE_B}
          s_add_u32 s64, s64, {WS_KV}
          v_and_b32 v15, 1, v5
          v_and_b32 v75, 7, v0
          v_lshlrev_b32 v75, 2, v75
          v_mov_b32 v76, v19
          v_mov_b32 v73, 1
          s_waitcnt vmcnt(0) lgkmcnt(0)
          ds_write_b32 v76, v73 offset:48
          buffer_load_dword v72, v75, s[{SD}:{SD+3}], 0 offen sc1''')
    a.stamp(1)
    a('s_waitcnt lgkmcnt(0)')
    gemm(a, list(range(18)), 1, RH, lambda ks: (16, ks * 1024), lambda ks, x: (17, ks * 512, 64), 5, swapped=True)
    E, E2 = 64, 68
    a(f'''ds_write_b32 v76, v73 offset:64
          s_nop 5
          s_cmp_lt_u32 s5, 3
          s_cbranch_scc0 L_a_e3
          v_cvt_pk_bf16_f32 v20, v{E}, v{E+1}
          v_cvt_pk_bf16_f32 v21, v{E+2}, v{E+3}
          s_cmp_eq_u32 s5, 2
          s_cbranch_scc1 L_a_e2
          s_lshl_b32 s60, s5, 9
          v_lshlrev_b32 v18, 4, v6
          v_lshl_add_u32 v18, v15, 3, v18
          v_cmp_lt_u32 vcc, 31, v0
          s_add_u32 s64, s64, s60
          s_nop 0
          v_cndmask_b32 v18, v3, v18, vcc
          buffer_store_dwordx2 v[20:21], v18, s[{WS}:{WS+3}], s64 offen sc1
          s_branch L_a_edone
          L_a_e2:
          v_cmp_lt_u32 vcc, 47, v0
          v_lshlrev_b32 v18, 2, v6
          s_nop 0
          v_cndmask_b32 v18, v3, v18, vcc
          buffer_store_dword v21, v18, s[{WS}:{WS+3}], s64 offen offset:1024 sc1
          s_branch L_a_edone
          L_a_e3:
          s_cmp_lt_u32 s5, 6
          s_cbranch_scc0 L_a_e6''')
    a(f'''v_cvt_pk_bf16_f32 v20, v{E2}, v{E2+1}
          v_cvt_pk_bf16_f32 v21, v{E2+2}, v{E2+3}
          s_sub_u32 s60, s5, 3
          s_lshl_b32 s60, s60, 7
          s_cmp_eq_u32 s5, 5
          s_cselect_b32 s60, 160, s60
          s_cselect_b32 s61, 13, 7
          s_and_b32 s62, s6, 1
          s_mul_i32 s62, s62, 592
          s_add_u32 s64, s64, s62
          v_lshrrev_b32 v18, 5, v0
          v_mul_u32_u24 v18, 288, v18
          v_lshl_add_u32 v18, v4, 4, v18
          v_lshl_add_u32 v18, v15, 3, v18
          v_add_u32 v18, s60, v18
          v_cmp_lt_u32 vcc, s61, v4
          v_lshlrev_b32 v22, 3, v15
          v_add_u32 v22, {576+128}, v22
          v_cndmask_b32 v18, v3, v18, vcc
          s_cmp_eq_u32 s5, 5
          s_cbranch_scc0 L_a_e4
          v_and_b32 v23, 47, v0
          v_cmp_eq_u32 vcc, 0, v23
          v_mov_b32 v23, 0x3f803f80
          s_nop 0
          v_cndmask_b32 v18, v18, v22, vcc
          v_cndmask_b32 v20, v20, v23, vcc
          v_cndmask_b32 v21, v21, v23, vcc
          L_a_e4:
          buffer_store_dwordx2 v[20:21], v18, s[{WS}:{WS+3}], s64 offen offset:{1152-128} sc1
          s_branch L_a_edone
          L_a_e6:
          v_mul_f32 v20, {f32bits(-math.log2(math.e))}, v{E}
          v_exp_f32 v20, v20
          s_lshl_b32 s60, s4, 8
          s_lshl_b32 s61, s6, 6
          v_add_f32 v20, 1.0, v20
          v_rcp_f32 v20, v20
          s_add_u32 s60, s60, s61
          s_add_u32 s60, s60, {WS_G}
          s_sub_u32 s61, s5, 4
          s_lshl_b32 s61, s61, 1
          s_sub_u32 s61, s61, 2
          v_cmp_eq_u32 vcc, s61, v5
          v_lshlrev_b32 v18, 2, v4
          s_nop 0
          v_cndmask_b32 v18, v3, v18, vcc
          buffer_store_dword v20, v18, s[{WS}:{WS+3}], s60 offen
          L_a_edone:
          s_mov_b32 s66, {SPIN}
          L_a_clrw:
          s_waitcnt vmcnt(0)
          v_cmp_ne_u32 vcc, 1, v72
          s_cbranch_vccz L_a_clrok
          s_sub_u32 s66, s66, 1
          s_cmp_eq_u32 s66, 0
          s_cbranch_scc1 L_a_clrok
          s_sleep 2
          buffer_load_dword v72, v75, s[{SD}:{SD+3}], 0 offen sc1
          s_branch L_a_clrw
          L_a_clrok:
          s_lshl_b32 s65, s2, 7
          s_add_u32 s65, s65, s39
          s_add_u32 s65, s65, {WS_FL}
          v_cmp_eq_u32 vcc, 0, v0
          v_mov_b32 v74, 0
          s_nop 0
          v_cndmask_b32 v74, v3, v74, vcc
          buffer_store_dword v73, v74, s[{WS}:{WS+3}], s65 offen sc1
          s_waitcnt lgkmcnt(0)''')
    a.stamp(2)
    a('s_barrier')
    a(f'''s_cmp_eq_u32 s6, 0
          s_cbranch_scc0 L_a_kvok
          v_lshlrev_b32 v18, 7, v0
          s_mov_b32 s60, {WS_FL}
          s_mov_b32 s61, {WS_FL+8192}
          s_mov_b32 s62, {WS_FL+16384}
          s_mov_b32 s63, {WS_FL+24576}
          s_mov_b32 s66, {SPIN}
          L_a_kvpoll:
          buffer_load_dwordx4 v[20:23], v18, s[{WS}:{WS+3}], s60 offen sc1
          buffer_load_dwordx4 v[24:27], v18, s[{WS}:{WS+3}], s61 offen sc1
          buffer_load_dwordx4 v[28:31], v18, s[{WS}:{WS+3}], s62 offen sc1
          buffer_load_dwordx4 v[32:35], v18, s[{WS}:{WS+3}], s63 offen sc1
          s_waitcnt vmcnt(0)''')
    for i in range(21, 36):
        a(f'v_and_b32 v20, v20, v{i}')
    a(f'''v_cmp_ne_u32 vcc, 1, v20
          s_cbranch_vccz L_a_kvok
          s_sub_u32 s66, s66, 1
          s_cmp_lg_u32 s66, 0
          s_cbranch_scc1 L_a_kvpoll
          L_a_kvok:''')
    a.stamp(3)
    a('s_barrier')
    a('s_barrier')
    a(f'''s_lshl_b32 s60, s6, 10
          s_add_u32 s60, s60, {16*1024}
          s_add_u32 s61, s60, {73*1024}
          s_mov_b32 s66, 14
          L_a_kvdma:
          s_mov_b32 m0, s60
          s_sub_u32 s66, s66, 1
          buffer_load_dwordx4 v1, s[{WS}:{WS+3}], s60 offen lds
          s_mov_b32 m0, s61
          s_add_u32 s60, s60, 4096
          buffer_load_dwordx4 v1, s[{WS}:{WS+3}], s61 offen lds
          s_add_u32 s61, s61, 4096
          s_cmp_lg_u32 s66, 0
          s_cbranch_scc1 L_a_kvdma
          s_cmp_eq_u32 s6, 0
          s_cbranch_scc0 L_a_kvd2
          s_mov_b32 m0, s60
          s_nop 0
          buffer_load_dwordx4 v1, s[{WS}:{WS+3}], s60 offen lds
          s_mov_b32 m0, s61
          s_nop 0
          buffer_load_dwordx4 v1, s[{WS}:{WS+3}], s61 offen lds
          L_a_kvd2:''')
    a.srd(SA, 20, 2359296)
    a.srd(SB, 22, 2359296)
    a.srd(SC, 24, 4608)
    KK, VV, SK = 20, 40, 60
    a(f'''s_mul_i32 s60, s6, 18432
          s_add_u32 s60, s60, s18
          s_add_u32 s60, s60, s19
          v_lshlrev_b32 v4, 2, v0
          v_add_u32 v4, s60, v4
          v_cmp_gt_u32 vcc, 36, v0
          s_mul_i32 s61, s5, 576
          v_add_u32 v6, s61, v1
          v_cndmask_b32 v4, v3, v4, vcc
          v_cndmask_b32 v6, v3, v6, vcc
          v_subrev_u32 v5, 4608, v4
          buffer_load_dwordx4 v[{SK}:{SK+3}], v6, s[{SC}:{SC+3}], 0 offen
          s_mov_b32 s60, 0''')
    for j in range(4):
        a(f'buffer_load_dword v{KK+j}, v5, s[{SA}:{SA+3}], 0 offen offset:{1152*j}')
    a(f'buffer_load_dword v{VV}, v5, s[{SB}:{SB+3}], 0 offen offset:3456')
    for q in range(4):
        for j in range(4):
            a(f'buffer_load_dword v{KK+4+4*q+j}, v4, s[{SA}:{SA+3}], s60 offen offset:{1152*j}')
            a(f'buffer_load_dword v{VV+1+4*q+j}, v4, s[{SB}:{SB+3}], s60 offen offset:{1152*j}')
        a('s_add_u32 s60, s60, 4608')
    a('s_waitcnt vmcnt(38)\ns_barrier')
    a(f'''s_mul_i32 s60, s5, {72*UR_CH}
          s_lshl_b32 s61, s4, 7
          s_lshl_b32 s62, s6, 5
          s_add_u32 s61, s61, s62
          s_sub_u32 s60, s60, s61
          s_add_u32 s60, s60, {WS_UR + 4064}
          v_mul_u32_u24 v4, {2*UR_CH}, v0
          v_add_u32 v4, s60, v4
          v_cmp_gt_u32 vcc, 36, v0
          s_mov_b32 s61, {UR_COPY}
          s_mov_b32 s62, {UR_CH}
          s_mov_b32 s63, {UR_CH+UR_COPY}
          v_cndmask_b32 v4, v3, v4, vcc
          s_waitcnt vmcnt(0)''')
    X, S8, U, P = 64, 104, 112, 132
    for ch in range(2):
        for j in range(37):
            if ch == 0:
                a(f'v_lshlrev_b32 v{X+j}, 16, v{KK+j}')
            else:
                a(f'v_and_b32 v{X+j}, 0xffff0000, v{KK+j}')
        for d in range(2):
            a(f'v_lshlrev_b32 v{S8+2*d}, 16, v{SK+2*ch+d}')
            a(f'v_and_b32 v{S8+2*d+1}, 0xffff0000, v{SK+2*ch+d}')
        for tau in range(17):
            u = U + tau
            a(f'v_mul_f32 v{u}, v{S8}, v{X+tau+3}')
            for i in range(1, 4):
                a(f'v_fmac_f32 v{u}, v{S8+i}, v{X+tau+3-i}')
            a(f'v_mul_f32 v{u}, v{u}, v{X+20+tau}')
        Pc = P + 16 * ch
        for d in range(8):
            a(f'v_cvt_pk_bf16_f32 v{Pc+d}, v{U+16-2*d}, v{U+15-2*d}')
            a(f'v_cvt_pk_bf16_f32 v{Pc+8+d}, v{U+15-2*d}, v{U+14-2*d}')
        s0, s1 = ('0', 's61') if ch == 0 else ('s62', 's63')
        a(f'''buffer_store_dwordx4 {vr(Pc,4)}, v4, s[{WS}:{WS+3}], {s0} offen sc1
              buffer_store_dwordx4 {vr(Pc+4,4)}, v4, s[{WS}:{WS+3}], {s0} offen offset:16 sc1
              buffer_store_dwordx4 {vr(Pc+8,4)}, v4, s[{WS}:{WS+3}], {s1} offen sc1
              buffer_store_dwordx4 {vr(Pc+12,4)}, v4, s[{WS}:{WS+3}], {s1} offen offset:16 sc1''')
    a(f'''s_add_u32 s60, s4, s6
          s_cmp_eq_u32 s60, 0
          s_cbranch_scc0 L_a_nopad
          v_mov_b32 v20, 0
          v_mov_b32 v21, 0
          v_mov_b32 v22, 0
          v_mov_b32 v23, 0''')
    for so in ('0', 's61', 's62', 's63'):
        a(f'buffer_store_dwordx4 v[20:23], v4, s[{WS}:{WS+3}], {so} offen offset:32 sc1')
        a(f'buffer_store_dwordx4 v[20:23], v4, s[{WS}:{WS+3}], {so} offen offset:48 sc1')
    a(f'''L_a_nopad:
          v_cmp_eq_u32 vcc, 0, v0
          v_mov_b32 v20, 1
          v_mov_b32 v21, 16
          v_cndmask_b32 v21, v3, v21, vcc
          s_waitcnt vmcnt(0)
          buffer_store_dword v20, v21, s[{WS}:{WS+3}], s65 offen sc1''')
    a.stamp(4)
    AF, BF, ACC = 32, 64, 128
    aA, aB, aB0, aU, aY = 4, 5, 6, 7, 8
    DG = 12
    a(f'''s_lshl_b32 s60, s6, 5
          s_add_u32 s60, s60, s4
          s_cmp_ge_u32 s60, {0 if os.environ.get('NOCONV') else 72}
          s_cbranch_scc1 L_a_repack
          s_mul_i32 s64, s5, 72
          s_add_u32 s64, s64, s60
          s_lshl_b32 s60, s64, 12
          s_add_u32 s{SA}, s26, s60
          s_addc_u32 s{SA+1}, s27, 0
          s_and_b32 s{SA+1}, s{SA+1}, 0xffff
          s_mov_b32 s{SA+2}, 4096
          s_mov_b32 s{SA+3}, 0x00020000
          s_mul_i32 s60, s64, {UR_CH}
          s_add_u32 s60, s60, {WS_UR}
          s_add_u32 s{SB}, s36, s60
          s_addc_u32 s{SB+1}, s37, 0
          s_and_b32 s{SB+1}, s{SB+1}, 0xffff
          s_mov_b32 s{SB+2}, {UR_CH}
          s_mov_b32 s{SB+3}, 0x00020000''')
    a.srd(SC, 28, 1152)
    a(f'''v_and_b32 v1, 15, v0
          v_bfe_u32 v2, v0, 4, 1
          v_lshrrev_b32 v23, 5, v0
          v_and_b32 v9, 7, v0
          v_bfe_u32 v10, v0, 3, 1
          v_lshl_or_b32 v9, v9, 1, v10
          v_lshlrev_b32 v11, 3, v2
          v_lshlrev_b32 v20, 4, v23
          v_sub_u32 v11, v11, v20
          v_sub_u32 v11, v11, v9
          v_add_u32 v11, 2047, v11
          v_lshlrev_b32 v11, 1, v11
          v_xor_b32 v20, 1, v10
          v_mul_u32_u24 v20, {UR_COPY-2}, v20
          v_add_u32 v11, v11, v20
          v_subrev_u32 v{aA}, {64*56}, v11
          v_sub_u32 v11, v1, v23
          v_lshlrev_b32 v11, 5, v11
          v_lshl_add_u32 v{aB0}, v2, 4, v11
          v_add_u32 v{aB}, 512, v{aB0}
          v_lshlrev_b32 v11, 5, v1
          v_lshlrev_b32 v20, 4, v2
          v_sub_u32 v11, v20, v11
          v_add_u32 v{aU}, {4064 - 512*7}, v11
          v_lshl_or_b32 v11, v2, 1, v23
          v_lshlrev_b32 v11, 3, v11
          v_lshl_add_u32 v{aY}, v1, 5, v11
          s_lshl_b32 s67, s64, 12
          s_add_u32 s67, s67, {WS_Y}
          s_lshl_b32 s60, s64, 1
          v_mov_b32 v21, s60
          buffer_load_ushort v22, v21, s[{SC}:{SC+3}], 0 offen''')

    def loadB(buf):
        a(f'buffer_load_dwordx4 {vr(BF+32*buf,4)}, v{aB0}, s[{SA}:{SA+3}], 0 offen')
        for d in range(1, 8):
            a(f'buffer_load_dwordx4 {vr(BF+32*buf+4*d,4)}, v{aB}, s[{SA}:{SA+3}], 0 offen offset:{512*(d-1)}')
    loadB(0)
    a(f'''v_and_b32 v11, 7, v0
          v_bfe_u32 v20, v0, 3, 2
          v_lshl_or_b32 v11, v20, 6, v11
          v_lshlrev_b32 v11, 7, v11
          s_lshl_b32 s60, s5, 10
          s_add_u32 s60, s60, {WS_FL+16}
          s_mov_b32 s66, {SPIN}
          L_a_upoll:
          buffer_load_dwordx4 v[24:27], v11, s[{WS}:{WS+3}], s60 offen sc1
          s_waitcnt vmcnt(0)
          v_and_b32 v24, v24, v25
          v_and_b32 v26, v26, v27
          v_and_b32 v24, v24, v26
          v_cmp_ne_u32 vcc, 1, v24
          s_cbranch_vccz L_a_uok
          s_sleep 4
          s_sub_u32 s66, s66, 1
          s_cmp_lg_u32 s66, 0
          s_cbranch_scc1 L_a_upoll
          L_a_uok:''')
    for c in range(8):
        a(f'buffer_load_dwordx4 {vr(BF+32+4*c,4)}, v{aU}, s[{SB}:{SB+3}], 0 offen offset:{512*(7-c)}')
    for i in range(8):
        a(f'buffer_load_dwordx4 {vr(AF+4*i,4)}, v{aA}, s[{SB}:{SB+3}], 0 offen offset:{64*(56-8*i)}')
    a(f'''v_lshlrev_b32 v11, 3, v2
          v_add_u32 v11, v11, v9
          v_sub_u32 v11, 15, v11
          v_lshl_add_u32 v11, v23, 4, v11
          v_and_b32 v20, 1, v11
          v_lshlrev_b32 v20, 4, v20
          v_lshrrev_b32 v11, 1, v11
          v_lshlrev_b32 v22, v20, v22''')
    for d in range(4):
        a(f'''v_cmp_eq_u32 vcc, {d}, v11
              s_nop 1
              v_cndmask_b32 v{DG+d}, 0, v22, vcc''')
    a('s_waitcnt vmcnt(8)')
    a('s_nop 1')
    for c in range(8):
        a(f'v_mfma_f32_16x16x32_bf16 {vr(ACC+4*c,4)}, {vr(DG,4)}, {vr(BF+32+4*c,4)}, 0')
    a('s_mov_b32 s66, 4')
    a('L_a_cloop:')
    for buf in range(2):
        a(f'''v_subrev_u32 v{aA}, 64, v{aA}
              v_subrev_u32 v{aB}, 64, v{aB}
              v_subrev_u32 v{aB0}, 64, v{aB0}''')
        loadB(buf ^ 1)
        a('s_waitcnt vmcnt(8)')
        for i in range(7, -1, -1):
            for d in range(0, 8 - i):
                c = i + d
                a(f'v_mfma_f32_16x16x32_bf16 {vr(ACC+4*c,4)}, {vr(AF+4*i,4)}, {vr(BF+32*buf+4*d,4)}, {vr(ACC+4*c,4)}')
            a(f'buffer_load_dwordx4 {vr(AF+4*i,4)}, v{aA}, s[{SB}:{SB+3}], 0 offen offset:{64*(56-8*i)}')
    a('''s_sub_u32 s66, s66, 1
         s_cmp_lg_u32 s66, 0
         s_cbranch_scc1 L_a_cloop
         s_nop 7''')
    for c in range(8):
        x = ACC + 4 * c
        a(f'''v_permlane32_swap_b32 v{x}, v{x+2}
              v_permlane32_swap_b32 v{x+1}, v{x+3}
              v_cvt_pk_bf16_f32 v{x}, v{x}, v{x+2}
              v_cvt_pk_bf16_f32 v{x+1}, v{x+1}, v{x+3}
              buffer_store_dwordx2 {vr(x,2)}, v{aY}, s[{WS}:{WS+3}], s67 offen offset:{512*c}''')
    a('s_branch L_a_hend')
    a('''L_a_repack:
         s_cmp_eq_u32 s6, 3
         s_cbranch_scc0 L_a_hend''')
    a.srd(SA, 16, 663552)
    a(f'''s_mul_i32 s60, s4, 18
          s_mul_i32 s61, s5, 82944
          s_mul_i32 s62, s4, 2592
          s_add_u32 s61, s61, s62
          s_add_u32 s61, s61, {WS_WO}''')
    for m in range(3):
        a(f'''v_add_u32 v8, {64*m}, v0
              v_mul_u32_u24 v9, 7282, v8
              v_lshrrev_b32 v9, 16, v9
              v_mul_u32_u24 v10, 9, v9
              v_sub_u32 v10, v8, v10
              v_lshlrev_b32 v10, 4, v10
              v_add_u32 v9, s60, v9
              v_lshrrev_b32 v11, 4, v9
              v_mul_u32_u24 v11, 18, v11
              v_bfe_u32 v12, v9, 3, 1
              v_lshl_add_u32 v11, v12, 2, v11
              v_and_b32 v12, 1, v9
              v_lshl_add_u32 v11, v12, 3, v11
              v_bfe_u32 v13, v9, 1, 2
              v_add_u32 v11, v11, v13
              v_bfe_u32 v14, v9, 3, 3
              v_lshlrev_b32 v14, 2, v14
              v_lshl_add_u32 v14, v12, 1, v14
              v_lshrrev_b32 v12, 1, v13
              v_add_u32 v14, v14, v12
              v_mul_u32_u24 v14, 18, v14
              v_and_b32 v13, 1, v13
              v_add3_u32 v14, v14, v13, 16
              v_cmp_lt_u32 vcc, 511, v9
              v_lshlrev_b32 v{16+m}, 4, v8
              s_nop 0
              v_cndmask_b32 v11, v11, v14, vcc
              v_mul_u32_u24 v11, 1152, v11
              v_add3_u32 v11, v11, v10, s19
              v_cmp_gt_u32 vcc, 162, v8
              s_nop 1
              v_cndmask_b32 v11, v3, v11, vcc
              v_cndmask_b32 v{16+m}, v3, v{16+m}, vcc
              buffer_load_dwordx4 {vr(20+4*m,4)}, v11, s[{SA}:{SA+3}], 0 offen''')
    for m in range(3):
        a(f'''s_waitcnt vmcnt({2-m+m})
              buffer_store_dwordx4 {vr(20+4*m,4)}, v{16+m}, s[{WS}:{WS+3}], s61 offen''')
    a('L_a_hend:')
    a.stamp_out(0, WS)
    a('L_a_exit:\ns_endpgm')
    return a.text(), dict(name='ka_kernel', grid=256, block=768, lds=LDS, vgpr=168, sgpr=102)


def gen_kb():
    a = Asm()
    L_W = 0
    L_S = 82944
    L_FL = L_S + 4 * 6144
    LDS = L_FL + 64
    WS, SX, SO = 40, 44, 52
    a('kb_kernel:')
    a.stamp(0); a.stamp(5, True)
    a(f'''s_cmp_ge_u32 s2, 256
          s_cbranch_scc1 L_b_exit
          s_load_dwordx2 s[36:37], s[0:1], 112
          s_load_dwordx2 s[8:9], s[0:1], 0
          s_load_dwordx2 s[12:13], s[0:1], 96
          v_lshrrev_b32 v1, 6, v0
          v_and_b32 v0, 63, v0
          v_readfirstlane_b32 s3, v1
          v_mov_b32 v2, {L_FL}
          v_and_b32 v4, 15, v0
          v_lshl_add_u32 v5, v4, 2, v2
          v_mov_b32 v6, 0
          ds_write_b32 v5, v6
          s_and_b32 s4, s2, 7
          s_lshr_b32 s5, s2, 6
          s_lshl_b32 s5, s5, 3
          s_or_b32 s4, s4, s5
          s_lshr_b32 s5, s2, 3
          s_and_b32 s5, s5, 7
          s_and_b32 s6, s3, 3
          s_mul_i32 s18, s4, 73728
          s_mul_i32 s19, s5, 144
          v_lshlrev_b32 v1, 4, v0
          s_mul_i32 s60, s6, 18432
          s_add_u32 s18, s18, s60
          s_cmp_ge_u32 s3, 4
          s_cbranch_scc1 L_b_load''')
    OF = 96
    a(f'''s_add_u32 s60, s18, {WS_O}
          s_add_u32 s61, s60, 4096
          s_add_u32 s62, s60, 8192
          s_add_u32 s63, s60, 12288
          s_add_u32 s64, s60, 16384
          s_waitcnt lgkmcnt(0)''')
    a.srd(WS, 36, WS_SIZE)
    for ks in range(18):
        a(f'buffer_load_dwordx4 {vr(OF+4*ks,4)}, v1, s[{WS}:{WS+3}], s{60+ks//4} offen offset:{1024*(ks%4)}')
    a('s_barrier')
    a.srd(SX, 8, 2359296)
    a.srd(SO, 12, 2359296)
    a(f'''v_mov_b32 v3, {OOB}
          s_mul_i32 s65, s6, 6144
          s_add_u32 s65, s65, {L_S}
          s_mul_i32 s60, s5, {72*4096}
          s_lshl_b32 s61, s4, 7
          s_add_u32 s60, s60, s61
          s_lshl_b32 s61, s6, 5
          s_add_u32 s60, s60, s61
          s_add_u32 s60, s60, {WS_Y}''')
    XA = 84
    for m in range(3):
        a(f'''v_add_u32 v8, {64*m}, v0
              v_mul_u32_u24 v9, 7282, v8
              v_lshrrev_b32 v9, 16, v9
              v_mul_u32_u24 v10, 9, v9
              v_sub_u32 v10, v8, v10
              v_lshlrev_b32 v10, 4, v10
              v_mul_u32_u24 v9, 1152, v9
              v_add3_u32 v{XA+m}, v9, v10, s19
              v_lshrrev_b32 v9, 1, v8
              v_and_b32 v10, 1, v8
              v_lshlrev_b32 v10, 4, v10
              v_cmp_gt_u32 vcc, 144, v8
              v_lshl_add_u32 v9, v9, 12, v10
              s_add_u32 s61, s65, {1024*m}
              v_cndmask_b32 v{XA+m}, v3, v{XA+m}, vcc
              v_cndmask_b32 v9, v3, v9, vcc
              s_mov_b32 m0, s61
              s_add_u32 s61, s61, 3072
              buffer_load_dwordx4 v{XA+m}, s[{SX}:{SX+3}], s18 offen lds
              s_mov_b32 m0, s61
              s_nop 0
              buffer_load_dwordx4 v9, s[{WS}:{WS+3}], s60 offen lds''')
    GV = 87
    a(f'''s_lshl_b32 s60, s4, 8
          s_lshl_b32 s61, s6, 6
          s_add_u32 s60, s60, s61
          s_add_u32 s60, s60, {WS_G}
          v_lshlrev_b32 v11, 2, v4
          buffer_load_dword v{GV}, v11, s[{WS}:{WS+3}], s60 offen
          s_mov_b32 s60, 0''')
    addr_trW(a, 14, L_W, 60, 10, 11)
    a(f'''v_add_u32 v15, {9*4608}, v14
          v_mul_u32_u24 v88, 144, v4
          v_lshrrev_b32 v11, 4, v0
          v_lshl_add_u32 v88, v11, 3, v88
          v_add_u32 v88, s65, v88
          v_lshlrev_b32 v89, 3, v0
          v_add_u32 v89, s65, v89
          v_add_u32 v90, s65, v1''')
    a.stamp(1)

    def gateB(ks):
        if ks % 6 == 0:
            lds_wait(a, 2, 16 * (ks // 6), 4, 66)
            if ks == 0:
                a('s_waitcnt vmcnt(7)')
                a.stamp(2)
            return True
        return False
    gemm5(a, 32, 8, 64, lambda ks, x: ((14, ks * 4608 + 32 * x) if ks < 9 else (15, (ks - 9) * 4608 + 32 * x)),
          lambda ks: OF + 4 * ks, lambda ks: None, gateB, look=6)
    a.stamp(3)
    a('s_waitcnt vmcnt(0)')
    for x in range(5):
        a(f'ds_read_b64 {vr(20+2*x,2)}, v88 offset:{32*x}')
        a(f'ds_read_b64_tr_b16 {vr(32+2*x,2)}, v89 offset:{3072+512*x}')
    a(f'v_sub_f32 v91, 1.0, v{GV}')
    for x in range(5):
        acc = 64 + 4 * x
        a(f's_waitcnt lgkmcnt({8-2*x+(x if x else 0)})' if False else f's_waitcnt lgkmcnt({8-2*x+x})')
        for r in range(4):
            xs, ys = 20 + 2 * x + (r >> 1), 32 + 2 * x + (r >> 1)
            t = 8 + 2 * (r & 1)
            if r & 1:
                a(f'v_and_b32 v{t}, 0xffff0000, v{xs}')
                a(f'v_and_b32 v{t+1}, 0xffff0000, v{ys}')
            else:
                a(f'v_lshlrev_b32 v{t}, 16, v{xs}')
                a(f'v_lshlrev_b32 v{t+1}, 16, v{ys}')
            a(f'''v_mul_f32 v{t}, v{t}, v{t+1}
                  v_mul_f32 v{t}, v{t}, v91
                  v_fma_f32 v{acc+r}, v{GV}, v{acc+r}, v{t}''')
        a(f'''v_cvt_pk_bf16_f32 v{acc}, v{acc}, v{acc+1}
              v_cvt_pk_bf16_f32 v{acc+1}, v{acc+2}, v{acc+3}''')
        if x == 4:
            a(f'''v_cmp_gt_u32 vcc, 32, v0
                  s_and_saveexec_b64 s[62:63], vcc
                  ds_write_b64 v88, {vr(acc,2)} offset:{32*x}
                  s_mov_b64 exec, s[62:63]''')
        else:
            a(f'ds_write_b64 v88, {vr(acc,2)} offset:{32*x}')
    for m in range(3):
        a(f'ds_read_b128 {vr(20+4*m,4)}, v90 offset:{1024*m}')
    for m in range(3):
        a(f'''s_waitcnt lgkmcnt({2-m})
              buffer_store_dwordx4 {vr(20+4*m,4)}, v{XA+m}, s[{SO}:{SO+3}], s18 offen''')
    a.stamp(4)
    a.stamp_out(1, WS)
    if STAMPS:
        WGD = int(os.environ.get('WGD', '0'))
        a(f'''s_cmp_eq_u32 s2, {WGD}
              s_cbranch_scc0 L_b_nodbg
              s_cmp_eq_u32 s3, 0
              s_cbranch_scc0 L_b_nodbg
              s_load_dwordx2 s[34:35], s[0:1], 104
              v_lshlrev_b32 v4, 2, v0
              v_cmp_gt_u32 vcc, 8, v0
              v_add_u32 v5, {8*32}, v4
              v_add_u32 v6, {4*32-32}, v4
              v_cndmask_b32 v5, v6, v5, vcc
              s_mov_b32 s60, {WS_DBG + WGD*16*32}
              buffer_load_dword v7, v5, s[{WS}:{WS+3}], s60 offen
              s_waitcnt vmcnt(0) lgkmcnt(0)''')
        a.srd(56, 34, 64)
        a(f'''v_mov_b32 v8, s94
              v_mov_b32 v9, s96
              v_cmp_eq_u32 vcc, 13, v0
              s_nop 1
              v_cndmask_b32 v7, v7, v8, vcc
              v_cmp_eq_u32 vcc, 15, v0
              s_nop 1
              v_cndmask_b32 v7, v7, v9, vcc
              buffer_store_dword v7, v4, s[56:59], 0 offen
              L_b_nodbg:''')
    a('s_endpgm')
    a('L_b_load:')
    a(f'''s_mul_i32 s62, s5, 82944
          s_add_u32 s62, s62, {WS_WO}
          s_lshl_b32 s63, s6, 10
          s_min_u32 s64, s6, 2
          s_lshl_b32 s64, s64, 10
          s_lshl_b32 s60, s6, 2
          v_add_u32 v19, s60, v2
          v_mov_b32 v18, 1
          s_waitcnt lgkmcnt(0)''')
    a.srd(WS, 36, WS_SIZE)
    a('s_barrier')

    def chunk(c):
        for m in range(7):
            a(f'''s_add_u32 s60, s{63 if m < 6 else 64}, {(27*c+4*m)*1024}
                  s_mov_b32 m0, s60
                  s_add_u32 s61, s60, s62
                  buffer_load_dwordx4 v1, s[{WS}:{WS+3}], s61 offen lds''')
    chunk(0); chunk(1)
    a('s_waitcnt vmcnt(7)\nds_write_b32 v19, v18')
    chunk(2)
    a('s_waitcnt vmcnt(7)\nds_write_b32 v19, v18 offset:16')
    a('s_waitcnt vmcnt(0)\nds_write_b32 v19, v18 offset:32')
    a.stamp_out(1, WS)
    a('L_b_exit:\ns_endpgm')
    return a.text(), dict(name='kb_kernel', grid=256, block=512, lds=LDS, vgpr=168, sgpr=102)


def main(out_path):
    ref = open(os.path.join(os.path.dirname(os.path.abspath(__file__)), '..', 'cdna_kernels', NAME + '.s.ref')).read()
    head = [l for l in ref.split('\n') if l.startswith(';') and '@launch' not in l and 'Override launch' not in l
            and 'grid=ceil' not in l]
    kernels = [gen_ka(), gen_kb()]
    s = '\n'.join(head) + '\n'
    for _, k in kernels:
        s += f"; @launch kernel={k['name']} grid=({k['grid']},1,1) block=({k['block']},1,1) lds={k['lds']}\n"
    s += '.amdgcn_target "amdgcn-amd-amdhsa--gfx950"\n.text\n'
    for t, k in kernels:
        s += f".globl {k['name']}\n.p2align 8\n.type {k['name']},@function\n" + t
    s += '.section .rodata,"a"\n'
    for _, k in kernels:
        s += f'''.p2align 6
.amdhsa_kernel {k['name']}
  .amdhsa_next_free_vgpr {k['vgpr']}
  .amdhsa_next_free_sgpr {k['sgpr']}
  .amdhsa_accum_offset {k['vgpr']}
  .amdhsa_group_segment_fixed_size 0
  .amdhsa_kernarg_size 120
  .amdhsa_user_sgpr_count 2
  .amdhsa_user_sgpr_kernarg_segment_ptr 1
  .amdhsa_system_sgpr_workgroup_id_x 1
.end_amdhsa_kernel
'''
    open(out_path, 'w').write(s)


if __name__ == '__main__':
    main(sys.argv[1] if len(sys.argv) > 1 else os.path.join(os.path.dirname(os.path.abspath(__file__)), '..', 'cdna_kernels', NAME + '.s'))
```

```python
import math, sys, os, struct

NAME = "gated_mix__grouped_kv_mqa__ssm_conv_h3__prompt"

WS_KV = 0
TILE_B = 2368
VG = 608
HALF_P = 74
KV_BYTES = 64 * TILE_B
WS_FL = 0x30000
WS_G = 0x280000
WS_UR = 0x290000
UR_COPY = 4224
UR_CH = 8448
WS_O = 0x740000
WS_Y = 0x980000
WS_WO = 0x40000
WS_DBG = 0xC00000
WS_SIZE = 0x1000000
OOB = 0x7FFFFF00
SPIN = 20000
STAMPS = int(os.environ.get('STAMPS', '0'))
QSCALE = (18 ** -0.5) * math.log2(math.e)


def f32bits(x):
    return struct.unpack('<I', struct.pack('<f', x))[0]


def vr(a, n):
    return f'v[{a}:{a+n-1}]' if n > 1 else f'v{a}'


class Asm:
    def __init__(self):
        self.lines = []

    def __call__(self, s):
        for ln in s.split('\n'):
            ln = ln.strip()
            if ln:
                self.lines.append(('    ' + ln) if not ln.endswith(':') else ln)

    def srd(self, d, b, nbytes):
        self(f'''s_mov_b32 s{d}, s{b}
                 s_and_b32 s{d+1}, s{b+1}, 0xffff
                 s_mov_b32 s{d+2}, {nbytes}
                 s_mov_b32 s{d+3}, 0x00020000''')

    def dma_seq(self, n, vaddr, srd, s_src, d_src, s_lds, d_lds):
        for i in range(n):
            self(f'''s_mov_b32 m0, s{s_lds}
                     s_add_u32 s{s_lds}, s{s_lds}, {d_lds}
                     buffer_load_dwordx4 v{vaddr}, s[{srd}:{srd+3}], s{s_src} offen lds
                     s_add_u32 s{s_src}, s{s_src}, {d_src}''')

    def stamp(self, i, real=False):
        if not STAMPS:
            return
        op = 's_memrealtime' if real else 's_memtime'
        self(f'''s_waitcnt lgkmcnt(0)
                 {op} s[{84+2*i}:{85+2*i}]
                 s_waitcnt lgkmcnt(0)''')

    def stamp_out(self, kidx, ws):
        if not STAMPS:
            return
        self('s_waitcnt vmcnt(0)')
        self.stamp(7); self.stamp(6, True)
        self(f'''s_lshl_b32 s82, s2, 4
                 s_add_u32 s82, s82, s3
                 s_lshl_b32 s82, s82, 5
                 s_add_u32 s82, s82, {WS_DBG + kidx*256*16*32}
                 v_mov_b32 v8, s84
                 v_mov_b32 v9, s86
                 v_mov_b32 v10, s88
                 v_mov_b32 v11, s90
                 v_mov_b32 v12, s92
                 v_mov_b32 v13, s94
                 v_mov_b32 v14, s96
                 v_mov_b32 v15, s98
                 v_mov_b32 v7, 0
                 buffer_store_dwordx4 v[8:11], v7, s[{ws}:{ws+3}], s82 offen
                 buffer_store_dwordx4 v[12:15], v7, s[{ws}:{ws+3}], s82 offen offset:16''')

    def text(self):
        return '\n'.join(self.lines) + '\n'


def gemm(a, kss, nA, R, offB, offA, depth, swapped=False, first_ks=0):
    nrd = 1 + 2 * nA
    nb = depth

    def reads(i):
        ks = kss[i]
        buf = i % nb
        reg, imm = offB(ks)
        a(f'ds_read_b128 {vr(R["B"][buf], 4)}, v{reg} offset:{imm}')
        for x in range(nA):
            d = R['A'][buf] + 4 * x
            reg, imm, dl = offA(ks, x)
            a(f'ds_read_b64_tr_b16 {vr(d, 2)}, v{reg} offset:{imm}')
            a(f'ds_read_b64_tr_b16 {vr(d+2, 2)}, v{reg} offset:{imm+dl}')

    n = len(kss)
    for i in range(min(nb - 1, n)):
        reads(i)
    for i, ks in enumerate(kss):
        buf = i % nb
        if i + nb - 1 < n:
            reads(i + nb - 1)
        later = min(n - 1, i + nb - 1) - i
        a(f's_waitcnt lgkmcnt({later*nrd})')
        for x in range(nA):
            acc = R['acc'] + 4 * x
            cin = '0' if ks == first_ks else vr(acc, 4)
            a(f'v_mfma_f32_16x16x32_bf16 {vr(acc,4)}, {vr(R["A"][buf]+4*x,4)}, {vr(R["B"][buf],4)}, {cin}')
            if swapped:
                acc = R['acc2']
                cin = '0' if ks == first_ks else vr(acc, 4)
                a(f'v_mfma_f32_16x16x32_bf16 {vr(acc,4)}, {vr(R["B"][buf],4)}, {vr(R["A"][buf]+4*x,4)}, {cin}')


def gemm5(a, Aring, nring, acc, offA, Breg, offB, gate, look=5):
    steps = [(ks, x) for ks in range(18) for x in range(5)]
    fifo = []
    need = {}

    def issue(si):
        ks, x = steps[si]
        if x == 0:
            if gate(ks):
                fifo.clear()
            ob = offB(ks)
            if ob is not None:
                a(f'ds_read_b128 {vr(Breg(ks), 4)}, v{ob[0]} offset:{ob[1]}')
                fifo.append(('b', ks))
        d = Aring + 4 * (si % nring)
        reg, imm = offA(ks, x)
        a(f'ds_read_b64_tr_b16 {vr(d, 2)}, v{reg} offset:{imm}')
        a(f'ds_read_b64_tr_b16 {vr(d+2, 2)}, v{reg} offset:{imm+144}')
        fifo.append(('a0', si)); fifo.append(('a1', si))

    assert look < nring
    for si in range(look):
        issue(si)
    for si, (ks, x) in enumerate(steps):
        if si + look < len(steps):
            issue(si + look)
        if ('a1', si) in fifo:
            later = len(fifo) - 1 - fifo.index(('a1', si))
            assert later <= 15
            a(f's_waitcnt lgkmcnt({later})')
            del fifo[:len(fifo) - later]
        c = acc + 4 * x
        cin = '0' if ks == 0 else vr(c, 4)
        a(f'v_mfma_f32_16x16x32_bf16 {vr(c,4)}, {vr(Aring+4*(si%nring),4)}, {vr(Breg(ks),4)}, {cin}')


_uid = [0]


def lds_wait(a, vaddr, imm, t, s_cnt, n=4, val=None, sleep=1):
    _uid[0] += 1
    L = f'L_lw{_uid[0]}'
    a(f's_mov_b32 s{s_cnt}, {SPIN*8}')
    a(f'{L}:')
    if n == 4:
        a(f'''ds_read_b128 {vr(t,4)}, v{vaddr} offset:{imm}
              s_waitcnt lgkmcnt(0)
              v_min_u32 v{t}, v{t}, v{t+1}
              v_min3_u32 v{t}, v{t}, v{t+2}, v{t+3}''')
    else:
        a(f'''ds_read_b32 v{t}, v{vaddr} offset:{imm}
              s_waitcnt lgkmcnt(0)''')
    a(f'''v_cmp_gt_u32 vcc, {val or 1}, v{t}
          s_cbranch_vccz {L}_ok
          s_sleep {sleep}
          s_sub_u32 s{s_cnt}, s{s_cnt}, 1
          s_cmp_lg_u32 s{s_cnt}, 0
          s_cbranch_scc1 {L}
          {L}_ok:''')


def addr_wstream(a, dst, s_stream, t0, t1, t2, s_tmp):
    a(f'''s_lshl_b32 s{s_tmp}, {s_stream}, 6
          v_add_u32 v{t0}, s{s_tmp}, v0
          v_mul_u32_u24 v{t1}, 7282, v{t0}
          v_lshrrev_b32 v{t1}, 16, v{t1}
          v_mul_u32_u24 v{dst}, 9, v{t1}
          v_sub_u32 v{t0}, v{t0}, v{dst}
          v_lshlrev_b32 v{t0}, 4, v{t0}
          v_and_b32 v{dst}, 56, v{t1}
          v_and_b32 v{t2}, 1, v{t1}
          v_lshl_add_u32 v{dst}, v{t2}, 2, v{dst}
          v_bfe_u32 v{t2}, v{t1}, 1, 2
          v_add_u32 v{dst}, v{dst}, v{t2}
          v_mul_u32_u24 v{dst}, 1152, v{dst}
          v_add3_u32 v{dst}, v{dst}, v{t0}, s19''')


def addr_trW(a, dst, base_imm, s_add, t0, t1):
    a(f'''v_lshrrev_b32 v{t0}, 4, v0
          v_lshlrev_b32 v{t0}, 3, v{t0}
          v_bfe_u32 v{t1}, v0, 2, 2
          v_lshl_add_u32 v{t0}, v{t1}, 1, v{t0}
          v_mul_u32_u24 v{t0}, 144, v{t0}
          v_and_b32 v{t1}, 3, v0
          v_lshl_add_u32 v{t0}, v{t1}, 3, v{t0}
          v_add_u32 v{t0}, {base_imm}, v{t0}
          v_add_u32 v{dst}, s{s_add}, v{t0}''')


def addr_xfrag(a, dst, vn, vg, t0, s_tmp):
    a(f'''v_and_b32 v{vn}, 15, v0
          v_lshrrev_b32 v{t0}, 2, v{vn}
          v_sub_u32 v{t0}, 0, v{t0}
          v_lshrrev_b32 v{vg}, 4, v0
          v_xor_b32 v{t0}, v{t0}, v{vg}
          v_and_b32 v{t0}, 3, v{t0}
          v_lshlrev_b32 v{t0}, 4, v{t0}
          v_lshl_add_u32 v{dst}, v{vn}, 6, v{t0}
          s_mul_i32 s{s_tmp}, s6, 18432
          v_add_u32 v{dst}, s{s_tmp}, v{dst}''')


def addr_qx(a, d, col_imm, v_col0, v_n, s_base, t0, t1, t2):
    a(f'''v_add_u32 v{t0}, {col_imm}, v{v_col0}
          v_mul_u32_u24 v{t1}, 3641, v{t0}
          v_lshrrev_b32 v{t1}, 16, v{t1}
          v_mul_u32_u24 v{t2}, 18, v{t1}
          v_sub_u32 v{t2}, v{t0}, v{t2}
          v_mul_u32_u24 v{t1}, 576, v{t1}
          v_lshrrev_b32 v{t0}, 3, v{t2}
          v_lshl_add_u32 v{t0}, v{t0}, 4, v{v_n}
          v_lshlrev_b32 v{t0}, 4, v{t0}
          v_and_b32 v{d}, 7, v{t2}
          v_lshl_add_u32 v{t0}, v{d}, 1, v{t0}
          v_cmp_gt_u32 vcc, 16, v{t2}
          v_lshlrev_b32 v{d}, 2, v{v_n}
          v_add_u32 v{d}, 512, v{d}
          v_cndmask_b32 v{d}, v{d}, v{t0}, vcc
          v_add3_u32 v{d}, v{d}, v{t1}, s{s_base}''')


def gen_ka():
    a = Asm()
    L_W = 73728
    L_WC = 154368
    L_FL = 163584
    LDS = 163840
    WS, SA, SB, SC, SD = 40, 44, 48, 52, 56
    a('ka_kernel:')
    a.stamp(0); a.stamp(5, True)
    a(f'''s_cmp_ge_u32 s2, 256
          s_cbranch_scc1 L_a_exit
          s_load_dwordx8 s[8:15], s[0:1], 0
          s_load_dwordx2 s[36:37], s[0:1], 112
          s_load_dwordx8 s[28:35], s[0:1], 80
          s_load_dwordx2 s[16:17], s[0:1], 32
          s_load_dwordx8 s[20:27], s[0:1], 48
          v_lshrrev_b32 v1, 6, v0
          v_and_b32 v0, 63, v0
          v_readfirstlane_b32 s3, v1
          v_mov_b32 v2, {L_FL}
          v_lshl_add_u32 v4, v0, 2, v2
          v_mov_b32 v5, 0
          ds_write_b32 v4, v5
          s_and_b32 s4, s2, 7
          s_lshr_b32 s5, s2, 6
          s_lshl_b32 s5, s5, 3
          s_or_b32 s4, s4, s5
          s_lshr_b32 s5, s2, 3
          s_and_b32 s5, s5, 7
          s_and_b32 s6, s3, 3
          s_lshr_b32 s7, s3, 2
          s_mul_i32 s18, s4, 73728
          s_mul_i32 s19, s5, 144
          v_mov_b32 v3, {OOB}
          v_lshlrev_b32 v1, 4, v0
          s_lshl_b32 s39, s6, 2
          v_add_u32 v19, s39, v2
          v_mov_b32 v18, 1
          s_cmp_eq_u32 s7, 2
          s_cbranch_scc1 L_a_helper
          s_cmp_eq_u32 s7, 1
          s_cbranch_scc1 L_a_cons''')

    addr_wstream(a, 7, 's6', 10, 11, 12, 60)
    a('s_add_u32 s61, s6, 4')
    addr_wstream(a, 8, 's61', 10, 11, 12, 60)
    addr_wstream(a, 9, '8', 10, 11, 12, 60)
    a(f'''s_lshl_b32 s62, s6, 10
          s_add_u32 s62, s62, {L_W}
          s_cmp_eq_u32 s6, 3
          s_cselect_b32 s63, 0, s6
          s_and_b32 s64, s6, 1
          s_waitcnt lgkmcnt(0)
          s_barrier''')
    a.srd(SB, 10, 663552)
    a.srd(WS, 36, WS_SIZE)

    def wpiece(vaddr, e, lds_add):
        a(f'''s_add_u32 s60, s62, {e*9216 + lds_add}
              s_mov_b32 m0, s60
              s_mov_b32 s61, {e*73728}
              buffer_load_dwordx4 v{vaddr}, s[{SB}:{SB+3}], s61 offen lds''')

    def wpiece8(s_e, e0):
        a(f'''s_add_u32 s61, s{s_e}, {e0}
              s_mul_i32 s60, s61, 9216
              s_add_u32 s60, s60, {L_W + 8192}
              s_mov_b32 m0, s60
              s_mul_i32 s61, s61, 73728
              buffer_load_dwordx4 v9, s[{SB}:{SB+3}], s61 offen lds''')

    PACE = int(os.environ.get('PACE', '4'))
    seq = []
    for c in range(3):
        for e in range(3 * c, 3 * c + 3):
            seq.append(('w', 7, e, 0)); seq.append(('w', 8, e, 4096))
        seq.append(('8', 3 * c))
    for n, op in enumerate(seq):
        if n == 18:
            lds_wait(a, 2, 64, 32, 66)
        if op[0] == 'w':
            wpiece(op[1], op[2], op[3])
        else:
            wpiece8(63, op[1])
        if n >= PACE:
            a(f's_waitcnt vmcnt({PACE})')
        if n - PACE in (6, 13):
            a(f'ds_write_b32 v19, v18 offset:{16*((n-PACE)//7)}')
    for last in (6, 13, 20):
        if last + PACE > 20:
            a(f'''s_waitcnt vmcnt({20-last})
                  ds_write_b32 v19, v18 offset:{16*(last//7)}''')
    a.stamp(1)
    a(f'''s_cmp_eq_u32 s6, 0
          s_cbranch_scc0 L_a_kvok''')
    lds_wait(a, 2, 32, 32, 66)
    lds_wait(a, 2, 80, 32, 66, n=1)
    a(f'''
          v_lshrrev_b32 v18, 1, v0
          v_lshlrev_b32 v18, 7, v18
          v_and_b32 v20, 1, v0
          v_lshl_add_u32 v18, v20, 4, v18
          s_mov_b32 s60, {WS_FL}
          s_mov_b32 s66, {SPIN}
          L_a_kvpoll:
          buffer_load_dwordx4 v[20:23], v18, s[{WS}:{WS+3}], s60 offen sc1
          s_waitcnt vmcnt(0)
          v_and_b32 v20, v20, v21
          v_and_b32 v22, v22, v23
          v_and_b32 v20, v20, v22
          v_cmp_ne_u32 vcc, 1, v20
          s_cbranch_vccz L_a_kvok
          s_sleep 2
          s_sub_u32 s66, s66, 1
          s_cmp_lg_u32 s66, 0
          s_cbranch_scc1 L_a_kvpoll
          L_a_kvok:''')
    a('s_branch L_a_b3a')

    a('L_a_cons:')
    a('s_mov_b32 s60, 0')
    addr_trW(a, 14, L_W, 60, 10, 11)
    a(f'v_add_u32 v15, {9*4608}, v14')
    addr_xfrag(a, 16, 10, 12, 11, 60)
    a('''v_lshlrev_b32 v12, 2, v12
         s_waitcnt lgkmcnt(0)''')
    a.srd(WS, 36, WS_SIZE)
    a.srd(SD, 34, 256)
    a(f'''s_add_u32 s64, s2, s6
          s_cmp_eq_u32 s64, 0
          s_cbranch_scc0 L_a_noclr
          v_lshlrev_b32 v20, 7, v0
          s_mov_b32 s64, {WS_FL}
          v_mov_b32 v24, 0
          v_mov_b32 v25, 0
          v_mov_b32 v26, 0
          v_mov_b32 v27, 0
          buffer_store_dwordx4 v[24:27], v20, s[{WS}:{WS+3}], s64 offen sc1
          buffer_store_dwordx4 v[24:27], v20, s[{WS}:{WS+3}], s64 offen offset:16 sc1
          v_cmp_eq_u32 vcc, 0, v0
          s_nop 1
          v_cndmask_b32 v20, v3, v24, vcc
          s_barrier
          s_waitcnt vmcnt(0)
          buffer_store_dword v18, v20, s[{SD}:{SD+3}], 0 offen sc1
          s_branch L_a_clrd
          L_a_noclr:
          s_barrier
          L_a_clrd:''')
    QAD = 84
    a('s_add_u32 s60, s60, 15360')
    for x in range(5):
        for pr in range(2):
            addr_qx(a, QAD + 2 * x + pr, 16 * x + 2 * pr, 12, 10, 60, 9, 11, 13)
    lds_wait(a, 19, 48, 4, 66, n=1)
    a.stamp(1)

    def gateA(ks):
        if ks % 6 == 0:
            lds_wait(a, 2, 16 * (ks // 6), 4, 66)
            return True
        return False
    gemm5(a, 32, 8, 64, lambda ks, x: ((14, ks * 4608 + 32 * x) if ks < 9 else (15, (ks - 9) * 4608 + 32 * x)),
          lambda ks: 20 + 4 * (ks % 3), lambda ks: (16, ks * 1024), gateA)
    lds_wait(a, 19, 64, 4, 66, n=1)
    a(f's_mov_b32 s60, {f32bits(QSCALE)}')
    for x in range(5):
        acc = 64 + 4 * x
        for r in range(4):
            a(f'v_mul_f32 v{acc+r}, s60, v{acc+r}')
        a(f'v_cvt_pk_bf16_f32 v{acc}, v{acc}, v{acc+1}')
        a(f'v_cvt_pk_bf16_f32 v{acc+1}, v{acc+2}, v{acc+3}')
        a(f'ds_write_b32 v{QAD+2*x}, v{acc}')
        a(f'ds_write_b32 v{QAD+2*x+1}, v{acc+1}')
    a('L_a_b3a:')
    a.stamp(2)
    a('s_waitcnt lgkmcnt(0)\ns_barrier')
    a.stamp(3)
    a('s_lshl_b32 s60, s3, 10')
    for add in (0, HALF_P):
        a(f'''s_add_u32 s61, s60, {add*1024}
              s_mov_b32 m0, s61
              s_nop 0
              buffer_load_dwordx4 v1, s[{WS}:{WS+3}], s61 offen lds''')
    a('''s_cmp_lt_u32 s3, 6
         s_cbranch_scc0 L_a_c0d''')
    for add in (8, HALF_P + 8):
        a(f'''s_add_u32 s61, s60, {add*1024}
              s_mov_b32 m0, s61
              s_nop 0
              buffer_load_dwordx4 v1, s[{WS}:{WS+3}], s61 offen lds''')
    a('L_a_c0d:')

    QA1, QA2, QB1, QB2 = 4, 8, 12, 10
    K1 = [16, 20]
    K2 = [24, 26]
    VA, VB = 28, 32
    IDX, aK1, aK2, aV = 36, 37, 38, 39
    NMA, NMB = 40, 41
    T0 = 42
    S = [48, 64, 80, 96]
    OA, OB = 112, 128
    a(f'''s_mul_i32 s60, s6, 576
          s_add_u32 s60, s60, 15360
          v_bfe_u32 v{T0}, v0, 4, 1
          v_mul_u32_u24 v{T0}, 18432, v{T0}
          v_add_u32 v{T0}, s60, v{T0}
          v_and_b32 v{T0+2}, 15, v0
          v_lshl_add_u32 v{T0+1}, v{T0+2}, 2, v{T0}
          v_lshl_add_u32 v{T0}, v{T0+2}, 4, v{T0}
          v_lshrrev_b32 v{T0+3}, 5, v0
          v_lshl_add_u32 v{T0}, v{T0+3}, 8, v{T0}
          ds_read_b128 {vr(QA1,4)}, v{T0}
          ds_read_b128 {vr(QB1,4)}, v{T0} offset:36864
          ds_read_b32 v{QA2}, v{T0+1} offset:512
          ds_read_b32 v{QB2}, v{T0+1} offset:{36864+512}
          v_and_b32 v{T0+2}, 31, v0
          v_lshlrev_b32 v{aK2}, 2, v{T0+2}
          v_mov_b32 v{IDX}, 0xdddd
          v_mov_b32 v{K2[0]+1}, 0x3f80
          v_mov_b32 v{K2[1]+1}, 0x3f80
          v_mov_b32 v{QA2+1}, 0
          v_mov_b32 v{QB2+1}, 0
          s_mul_i32 s61, s7, {32*TILE_B}
          v_add_u32 v{aK1}, s61, v1
          v_add_u32 v{aK2}, s61, v{aK2}
          v_mul_u32_u24 v{T0+1}, 288, v{T0+3}
          v_lshl_add_u32 v{T0+1}, v{T0+2}, 4, v{T0+1}
          v_and_b32 v{T0+3}, 27, v{T0+2}
          v_cmp_eq_u32 vcc, 24, v{T0+3}
          v_mov_b32 v{T0+3}, 576
          v_mov_b32 v{T0+4}, 592
          v_cndmask_b32 v{T0+3}, v{T0+4}, v{T0+3}, vcc
          v_cmp_gt_u32 vcc, 18, v{T0+2}
          s_lshl_b32 s64, s5, 2
          s_nop 0
          v_cndmask_b32 v{aV}, v{T0+3}, v{T0+1}, vcc
          v_add_u32 v{aV}, s61, v{aV}
          s_add_u32 s64, s64, s6
          v_cmp_gt_u32 vcc, 32, v0
          s_mov_b32 s65, 0
          v_add_u32 v2, {128-16}, v2
          s_waitcnt lgkmcnt(0)
          v_cndmask_b32 v{QA2}, 0, v{QA2}, vcc
          v_cndmask_b32 v{QB2}, 0, v{QB2}, vcc
          s_waitcnt vmcnt(0)
          s_barrier''')
    M2 = os.environ.get('MAINST')
    a.stamp(1 if M2 else 4)
    if os.environ.get('OPRIO'):
        a(f'''s_cmp_eq_u32 s7, 0
             s_cbranch_scc0 L_a_np
             s_setprio {os.environ['OPRIO']}
             L_a_np:''')

    def qk1(dst, kb, q1):
        a(f'v_mfma_f32_32x32x16_bf16 {vr(dst,16)}, {vr(K1[kb],4)}, {vr(q1,4)}, 0')

    def qk2(dst, kb, q2):
        a(f'v_mfma_f32_32x32x8_bf16 {vr(dst,16)}, {vr(K2[kb],2)}, {vr(q2,2)}, {vr(dst,16)}')

    def pv(o, v, p):
        a(f'v_smfmac_f32_32x32x32_bf16 {vr(o,16)}, {vr(v,4)}, {vr(p,8)}, v{IDX}')

    def rdK(kb, tile):
        a(f'ds_read_b128 {vr(K1[kb],4)}, v{aK1} offset:{tile*TILE_B}')
        a(f'ds_read_b32 v{K2[kb]}, v{aK2} offset:{tile*TILE_B+1024}')

    def rdV(reg, tile, half):
        a(f'ds_read_b128 {vr(reg,4)}, v{aV} offset:{tile*TILE_B+1152+VG*half}')

    def maxtree(dst, s, init=None):
        if init is None:
            a(f'v_max3_f32 v{dst}, v{s}, v{s+1}, v{s+2}')
            rest = list(range(3, 16))
        else:
            rest = list(range(0, 16))
        while len(rest) >= 2:
            a(f'v_max3_f32 v{dst}, v{dst}, v{s+rest[0]}, v{s+rest[1]}')
            rest = rest[2:]
        if rest:
            a(f'v_max_f32 v{dst}, v{dst}, v{s+rest[0]}')

    def set_bias():
        for nm, q2, t in ((NMA, QA2, T0), (NMB, QB2, T0 + 1)):
            a(f'v_mov_b32 v{t}, v{nm}')
        a('s_nop 1')
        for nm, q2, t in ((NMA, QA2, T0), (NMB, QB2, T0 + 1)):
            a(f'v_permlane32_swap_b32 v{nm}, v{t}')
        a('v_cmp_gt_u32 vcc, 32, v0')
        for nm, q2, t in ((NMA, QA2, T0), (NMB, QB2, T0 + 1)):
            a(f'''v_max_f32 v{nm}, v{nm}, v{t}
                  v_cvt_pk_bf16_f32 v{t}, -v{nm}, 0
                  v_lshlrev_b32 v{nm}, 16, v{t}
                  v_cndmask_b32 v{q2+1}, 0, v{t}, vcc''')

    def zero_state():
        for i in range(16):
            a(f'v_mov_b32 v{OA+i}, 0')
            a(f'v_mov_b32 v{OB+i}, 0')
        for i in range(8, 16):
            a(f'v_mov_b32 v{S[3]+i}, 0')
        for i in range(4):
            a(f'v_mov_b32 v{VB+i}, 0')

    rdK(0, 0)
    a('s_waitcnt lgkmcnt(0)')
    qk1(S[0], 0, QA1); qk2(S[0], 0, QA2)
    qk1(S[1], 0, QB1); qk2(S[1], 0, QB2)
    zero_state()
    maxtree(NMA, S[0])
    maxtree(NMB, S[1])
    set_bias()
    a('L_a_restart:')
    rdK(0, 0)
    rdK(1, 1)
    rdV(VA, 0, 0)
    a('s_waitcnt lgkmcnt(3)')
    qk1(S[0], 0, QA1); qk2(S[0], 0, QA2)
    a(f's_mov_b32 s66, {16//int(os.environ.get("UNR", "2"))}')
    a('s_nop 10')
    a('.p2align 6')
    a('L_a_loop:')

    def exps(buf, lo):
        for i in range(lo, lo + 4):
            a(f'v_exp_f32 v{S[buf]+i}, v{S[buf]+i}')

    UNR = int(os.environ.get('UNR', '2'))
    for tg in range(2 * UNR):
        tl = tg & 1
        kb = tl & 1
        cur, nxt, prv = 2 * tl, 2 * tl + 1, (2 * tl + 3) % 4
        qk1(S[nxt], kb, QB1)
        exps(cur, 0)
        qk2(S[nxt], kb, QB2)
        exps(cur, 4)
        pv(OB, VB, S[prv] + 8)
        rdV(VB, tg, 1)
        exps(cur, 8)
        a('s_waitcnt lgkmcnt(1)')
        pv(OA, VA, S[cur])
        exps(cur, 12)
        cur, nxt, prv = 2 * tl + 1, (2 * tl + 2) % 4, 2 * tl
        qk1(S[nxt], kb ^ 1, QA1)
        exps(cur, 0)
        qk2(S[nxt], kb ^ 1, QA2)
        rdK(kb, tg + 2)
        exps(cur, 4)
        a('s_waitcnt lgkmcnt(2)')
        pv(OA, VB, S[prv] + 8)
        exps(cur, 8)
        pv(OB, VA, S[cur])
        rdV(VA, tg + 1, 0)
        exps(cur, 12)
    a(f'''v_add_u32 v{aK1}, {2*UNR*TILE_B}, v{aK1}
          v_add_u32 v{aK2}, {2*UNR*TILE_B}, v{aK2}
          v_add_u32 v{aV}, {2*UNR*TILE_B}, v{aV}
          s_add_u32 s67, s66, s65
          s_cmp_lt_u32 s67, 6
          s_cbranch_scc1 L_a_nobar
          s_cmp_gt_u32 s67, 8
          s_cbranch_scc1 L_a_nobar
          v_add_u32 v2, 16, v2''')
    lds_wait(a, 2, 0, T0 + 2, 67)
    a(f'''
          {'s_memtime s[88:89]' if (M2 and STAMPS) else ''}
          {'s_waitcnt lgkmcnt(0)' if (M2 and STAMPS) else ''}
          L_a_nobar:
          s_sub_u32 s66, s66, 1
          s_cmp_lg_u32 s66, 0
          s_cbranch_scc1 L_a_loop''')
    pv(OB, VB, S[3] + 8)
    a(f'''v_subrev_u32 v{aK1}, {32*TILE_B}, v{aK1}
          v_subrev_u32 v{aK2}, {32*TILE_B}, v{aK2}
          v_subrev_u32 v{aV}, {32*TILE_B}, v{aV}
          s_waitcnt lgkmcnt(0)
          s_nop 9''')
    a(f'''s_cmp_eq_u32 s65, 0
          s_cbranch_scc0 L_a_ok
          v_add_f32 v{T0}, |v{OA}|, |v{OB}|''')
    for i in range(1, 10):
        a(f'v_add_f32 v{T0}, v{T0}, |v{OA+i}|')
        a(f'v_add_f32 v{T0}, v{T0}, |v{OB+i}|')
    a(f'''v_mov_b32 v{T0+2}, 0x7e800000
          v_cmp_nlt_f32 vcc, v{T0}, v{T0+2}
          v_mov_b32 v{T0+2}, 0x4f800000
          v_cmp_nlt_f32 s[68:69], v{OA+12}, v{T0+2}
          v_cmp_nlt_f32 s[70:71], v{OB+12}, v{T0+2}
          s_or_b64 vcc, vcc, s[68:69]
          s_or_b64 vcc, vcc, s[70:71]
          s_cbranch_vccz L_a_ok
          s_mov_b32 s65, 64
          v_mov_b32 v{QA2+1}, 0
          v_mov_b32 v{QB2+1}, 0
          v_mov_b32 v{NMA}, 0xff800000
          v_mov_b32 v{NMB}, 0xff800000
          s_mov_b32 s66, 32
          L_a_mloop:''')
    rdK(0, 0)
    a(f'''v_add_u32 v{aK1}, {TILE_B}, v{aK1}
          v_add_u32 v{aK2}, {TILE_B}, v{aK2}
          s_waitcnt lgkmcnt(0)''')
    qk1(S[0], 0, QA1); qk2(S[0], 0, QA2)
    qk1(S[1], 0, QB1); qk2(S[1], 0, QB2)
    a('s_nop 11')
    maxtree(NMA, S[0], init=True)
    maxtree(NMB, S[1], init=True)
    a(f'''s_sub_u32 s66, s66, 1
          s_cmp_lg_u32 s66, 0
          s_cbranch_scc1 L_a_mloop
          v_subrev_u32 v{aK1}, {32*TILE_B}, v{aK1}
          v_subrev_u32 v{aK2}, {32*TILE_B}, v{aK2}''')
    set_bias()
    zero_state()
    a('s_branch L_a_restart')
    a('L_a_ok:')
    if M2: a.stamp(3)
    a(f'''s_mul_i32 s60, s3, 3072
          s_xor_b32 s61, s3, 4
          s_mul_i32 s61, s61, 3072
          v_add_u32 v{T0}, s60, v1
          v_add_u32 v{T0+1}, s61, v1
          s_cmp_eq_u32 s7, 0
          s_cbranch_scc1 L_a_x0''')
    for i in list(range(10)) + [12]:
        a(f'v_swap_b32 v{OA+i}, v{OB+i}')
    a(f'v_swap_b32 v{NMA}, v{NMB}')
    a('L_a_x0:')
    a(f'''v_mov_b32 v{OB+10}, v{OB+12}
          v_mov_b32 v{OB+11}, v{NMB}
          s_lshl_b32 s60, s4, 2
          s_lshl_b32 s61, s7, 1
          s_add_u32 s60, s60, s61
          s_mul_i32 s60, s60, 18432
          s_add_u32 s60, s60, {WS_O}
          s_lshr_b32 s61, s64, 1
          s_lshl_b32 s61, s61, 10
          s_and_b32 s62, s64, 1
          s_lshl_b32 s62, s62, 9
          s_add_u32 s61, s61, s62
          s_add_u32 s61, s61, s60
          v_bfe_u32 v{T0+2}, v0, 4, 1
          v_mul_u32_u24 v{T0+2}, 18432, v{T0+2}
          v_and_b32 v{T0+3}, 15, v0
          v_lshl_add_u32 v{T0+2}, v{T0+3}, 4, v{T0+2}
          v_lshrrev_b32 v{T0+3}, 5, v0
          v_lshl_add_u32 v{T0+3}, v{T0+3}, 8, v{T0+2}
          v_cmp_gt_u32 vcc, 32, v0
          s_lshr_b32 s62, s64, 4
          s_add_u32 s62, s62, 16
          s_lshl_b32 s62, s62, 10
          v_cndmask_b32 v{T0+2}, v3, v{T0+2}, vcc
          s_bfe_u32 s63, s64, 0x20002
          s_lshl_b32 s63, s63, 8
          s_add_u32 s62, s62, s63
          s_and_b32 s63, s64, 3
          s_lshl_b32 s63, s63, 2
          s_add_u32 s62, s62, s63
          s_add_u32 s62, s62, s60
          s_barrier''')
    if M2: a.stamp(4)
    a(f'''ds_write_b128 v{T0}, {vr(OB,4)}
          ds_write_b128 v{T0}, {vr(OB+4,4)} offset:1024
          ds_write_b128 v{T0}, {vr(OB+8,4)} offset:2048
          s_waitcnt lgkmcnt(0)
          s_barrier
          ds_read_b128 {vr(OB+8,4)}, v{T0+1} offset:2048
          ds_read_b128 {vr(OB,4)}, v{T0+1}
          ds_read_b128 {vr(OB+4,4)}, v{T0+1} offset:1024
          s_waitcnt lgkmcnt(2)
          v_min_f32 v{T0}, v{NMA}, v{OB+11}
          v_sub_f32 v{T0+1}, v{T0}, v{NMA}
          v_sub_f32 v{T0}, v{T0}, v{OB+11}
          v_exp_f32 v{T0+1}, v{T0+1}
          v_exp_f32 v{T0}, v{T0}
          s_nop 0
          v_mul_f32 v{T0+4}, v{T0+1}, v{OA+12}
          v_fmac_f32 v{T0+4}, v{T0}, v{OB+10}
          v_rcp_f32 v{T0+4}, v{T0+4}
          s_nop 0
          v_mul_f32 v{T0+1}, v{T0+1}, v{T0+4}
          v_mul_f32 v{T0}, v{T0}, v{T0+4}
          s_waitcnt lgkmcnt(0)''')
    for i in range(10):
        a(f'v_mul_f32 v{OA+i}, v{OA+i}, v{T0+1}')
        a(f'v_fmac_f32 v{OA+i}, v{OB+i}, v{T0}')
    for i in range(5):
        a(f'v_cvt_pk_bf16_f32 v{S[0]+i}, v{OA+2*i}, v{OA+2*i+1}')
    a(f'''buffer_store_dwordx4 {vr(S[0],4)}, v{T0+3}, s[{WS}:{WS+3}], s61 offen
          buffer_store_dword v{S[0]+4}, v{T0+2}, s[{WS}:{WS+3}], s62 offen''')
    a.stamp_out(0, WS)
    a('s_endpgm')

    a('L_a_helper:')
    a(f'''s_setprio 3
          s_cmp_ge_u32 s5, 3
          s_cselect_b32 s61, 3, 0
          s_sub_u32 s60, s5, s61
          s_lshl_b32 s61, s60, 4
          s_cmp_eq_u32 s60, 2
          s_cselect_b32 s61, 20, s61
          v_mul_u32_u24 v9, 36, v0
          v_add_u32 v9, s61, v9
          v_lshrrev_b32 v6, 2, v0
          v_lshrrev_b32 v8, 4, v0
          v_sub_u32 v8, 0, v8
          v_xor_b32 v8, v8, v0
          v_and_b32 v8, 3, v8
          v_lshlrev_b32 v8, 4, v8
          v_mul_u32_u24 v6, 1152, v6
          v_add_u32 v6, v6, v8
          s_mul_i32 s61, s6, 18432
          s_add_u32 s60, s61, s18
          s_mov_b32 s62, 0
          s_mov_b32 s63, {L_WC}
          s_waitcnt lgkmcnt(0)''')
    FINE = os.environ.get('FINE')
    if FINE: a.stamp(1)
    a.srd(SB, 8, 2359296)
    a(f'''s_cmp_lt_u32 s5, 3
          s_cselect_b32 s{SC}, s12, s14
          s_cselect_b32 s{SC+1}, s13, s15
          s_and_b32 s{SC+1}, s{SC+1}, 0xffff
          s_mov_b32 s{SC+2}, 20736
          s_mov_b32 s{SC+3}, 0x00020000''')
    a.srd(SA, 30, 1152)
    a.dma_seq(18, 6, SB, 60, 64, 61, 1024)
    a('''s_cmp_lt_u32 s5, 6
         s_cbranch_scc0 L_a_nowc''')
    a.dma_seq(9, 9, SC, 62, 2304, 63, 1024)
    a('''s_barrier
         s_branch L_a_wcd
         L_a_nowc:
         v_lshlrev_b32 v11, 1, v0''')
    for m in range(9):
        a(f'buffer_load_ushort v{20+m}, v11, s[{SA}:{SA+3}], 0 offen offset:{128*m}')
    a(f'''v_add_u32 v10, {L_WC}, v1
          s_barrier
          s_waitcnt vmcnt(0)''')
    for m in range(9):
        a(f'ds_write_b16 v10, v{20+m} offset:{1024*m}')
    a('L_a_wcd:')
    if FINE: a.stamp(2)
    a.srd(WS, 36, WS_SIZE)
    a.srd(SD, 34, 256)
    RH = dict(B=[20, 24, 28, 32, 36], A=[40, 44, 48, 52, 56], acc=64, acc2=68)
    a(f'''v_lshrrev_b32 v15, 4, v0
          v_lshlrev_b32 v15, 3, v15
          v_bfe_u32 v16, v0, 2, 2
          v_add_u32 v15, v15, v16
          v_and_b32 v16, 1, v0
          v_lshlrev_b32 v16, 3, v16
          v_lshl_add_u32 v17, v15, 4, v16
          v_add_u32 v17, {L_WC}, v17''')
    addr_xfrag(a, 16, 4, 5, 15, 60)
    a(f'''s_and_b32 s60, s6, 1
          s_lshl_b32 s60, s60, 4
          v_add_u32 v6, s60, v4
          s_lshl_b32 s64, s4, 1
          s_lshr_b32 s60, s6, 1
          s_add_u32 s64, s64, s60
          s_mul_i32 s64, s64, {TILE_B}
          s_add_u32 s64, s64, {WS_KV}
          v_and_b32 v15, 1, v5
          v_mov_b32 v75, 0
          v_mov_b32 v76, v19
          v_mov_b32 v73, 1
          s_waitcnt vmcnt(0) lgkmcnt(0)
          ds_write_b32 v76, v73 offset:48
          buffer_load_dword v72, v75, s[{SD}:{SD+3}], 0 offen sc1''')
    a.stamp(3 if FINE else 1)
    a('s_waitcnt lgkmcnt(0)')
    gemm(a, list(range(18)), 1, RH, lambda ks: (16, ks * 1024), lambda ks, x: (17, ks * 512, 64), 5, swapped=True)
    E, E2 = 64, 68
    if FINE: a.stamp(4)
    a(f'''s_nop 6
          s_cmp_lt_u32 s5, 3
          s_cbranch_scc0 L_a_e3
          v_cvt_pk_bf16_f32 v20, v{E}, v{E+1}
          v_cvt_pk_bf16_f32 v21, v{E+2}, v{E+3}
          s_cmp_eq_u32 s5, 2
          s_cbranch_scc1 L_a_e2
          s_lshl_b32 s60, s5, 9
          v_lshlrev_b32 v18, 4, v6
          v_lshl_add_u32 v18, v15, 3, v18
          v_cmp_lt_u32 vcc, 31, v0
          s_add_u32 s64, s64, s60
          s_nop 0
          v_cndmask_b32 v18, v3, v18, vcc
          buffer_store_dwordx2 v[20:21], v18, s[{WS}:{WS+3}], s64 offen sc1
          s_branch L_a_edone
          L_a_e2:
          v_cmp_lt_u32 vcc, 47, v0
          v_lshlrev_b32 v18, 2, v6
          s_nop 0
          v_cndmask_b32 v18, v3, v18, vcc
          buffer_store_dword v21, v18, s[{WS}:{WS+3}], s64 offen offset:1024 sc1
          s_branch L_a_edone
          L_a_e3:
          s_cmp_lt_u32 s5, 6
          s_cbranch_scc0 L_a_e6''')
    a(f'''v_cvt_pk_bf16_f32 v20, v{E2}, v{E2+1}
          v_cvt_pk_bf16_f32 v21, v{E2+2}, v{E2+3}
          s_sub_u32 s60, s5, 3
          s_lshl_b32 s60, s60, 7
          s_cmp_eq_u32 s5, 5
          s_cselect_b32 s60, 160, s60
          s_cselect_b32 s61, 13, 7
          s_and_b32 s62, s6, 1
          s_mul_i32 s62, s62, {VG}
          s_add_u32 s64, s64, s62
          v_lshrrev_b32 v18, 5, v0
          v_mul_u32_u24 v18, 288, v18
          v_lshl_add_u32 v18, v4, 4, v18
          v_lshl_add_u32 v18, v15, 3, v18
          v_add_u32 v18, s60, v18
          v_cmp_lt_u32 vcc, s61, v4
          v_lshlrev_b32 v22, 3, v5
          v_add_u32 v22, {576+128}, v22
          v_cndmask_b32 v18, v3, v18, vcc
          s_cmp_eq_u32 s5, 5
          s_cbranch_scc0 L_a_e4
          v_cmp_gt_u32 vcc, 32, v0
          v_mov_b32 v23, 0x3f803f80
          s_nop 0
          v_cndmask_b32 v23, 0, v23, vcc
          v_cmp_eq_u32 vcc, 0, v4
          s_nop 1
          v_cndmask_b32 v18, v18, v22, vcc
          v_cndmask_b32 v20, v20, v23, vcc
          v_cndmask_b32 v21, v21, v23, vcc
          L_a_e4:
          buffer_store_dwordx2 v[20:21], v18, s[{WS}:{WS+3}], s64 offen offset:{1152-128} sc1
          s_branch L_a_edone
          L_a_e6:
          v_mul_f32 v20, {f32bits(-math.log2(math.e))}, v{E}
          v_exp_f32 v20, v20
          s_lshl_b32 s60, s4, 8
          s_lshl_b32 s61, s6, 6
          v_add_f32 v20, 1.0, v20
          v_rcp_f32 v20, v20
          s_add_u32 s60, s60, s61
          s_add_u32 s60, s60, {WS_G}
          s_sub_u32 s61, s5, 4
          s_lshl_b32 s61, s61, 1
          s_sub_u32 s61, s61, 2
          v_cmp_eq_u32 vcc, s61, v5
          v_lshlrev_b32 v18, 2, v4
          s_nop 0
          v_cndmask_b32 v18, v3, v18, vcc
          buffer_store_dword v20, v18, s[{WS}:{WS+3}], s60 offen
          L_a_edone:
          ds_write_b32 v76, v73 offset:64
          s_mov_b32 s66, {SPIN}
          L_a_clrw:
          s_waitcnt vmcnt(0)
          v_cmp_ne_u32 vcc, 1, v72
          s_cbranch_vccz L_a_clrok
          s_sub_u32 s66, s66, 1
          s_cmp_eq_u32 s66, 0
          s_cbranch_scc1 L_a_clrok
          s_sleep 2
          buffer_load_dword v72, v75, s[{SD}:{SD+3}], 0 offen sc1
          s_branch L_a_clrw
          L_a_clrok:
          ds_write_b32 v76, v73 offset:80
          s_lshl_b32 s60, s4, 7
          s_lshl_b32 s61, s5, 2
          s_add_u32 s60, s60, s61
          s_add_u32 s60, s60, {WS_FL}
          s_lshr_b32 s65, s4, 3
          s_add_u32 s65, s65, s61
          s_lshl_b32 s65, s65, 7
          s_and_b32 s61, s4, 7
          s_lshl_b32 s61, s61, 2
          s_add_u32 s65, s65, s61
          s_add_u32 s65, s65, {WS_FL + 4096}
          v_cmp_eq_u32 vcc, 0, v0
          v_mov_b32 v17, 0
          s_cmp_eq_u32 s6, 0
          v_cndmask_b32 v17, v3, v17, vcc
          s_cbranch_scc0 L_a_nsig''')
    lds_wait(a, 2, 80, 20, 66)
    a(f'''buffer_store_dword v73, v17, s[{WS}:{WS+3}], s60 offen sc1
          L_a_nsig:
          s_waitcnt lgkmcnt(0)''')
    if not FINE: a.stamp(2)
    a('s_barrier')
    a('s_barrier')
    a(f'''s_lshl_b32 s60, s6, 10
          s_add_u32 s60, s60, {14*1024}
          s_add_u32 s61, s60, {HALF_P*1024}
          v_mov_b32 v18, 1''')
    for i in range(15):
        a(f'''s_mov_b32 m0, s60
              s_nop 0
              buffer_load_dwordx4 v1, s[{WS}:{WS+3}], s60 offen lds
              s_mov_b32 m0, s61
              s_add_u32 s60, s60, 4096
              buffer_load_dwordx4 v1, s[{WS}:{WS+3}], s61 offen lds
              s_add_u32 s61, s61, 4096''')
        if i in (9, 14):
            a(f'''s_waitcnt vmcnt(10)
                  ds_write_b32 v19, v18 offset:{128 + 16*((i-9)//5)}''')
    a.srd(SA, 20, 2359296)
    a.srd(SB, 22, 2359296)
    a.srd(SC, 24, 4608)
    KK, VV, SK = 20, 40, 60
    a(f'''s_mul_i32 s60, s6, 18432
          s_add_u32 s60, s60, s18
          s_add_u32 s60, s60, s19
          v_lshlrev_b32 v4, 2, v0
          v_add_u32 v4, s60, v4
          v_cmp_gt_u32 vcc, 36, v0
          s_mul_i32 s61, s5, 576
          v_add_u32 v6, s61, v1
          v_cndmask_b32 v4, v3, v4, vcc
          v_cndmask_b32 v6, v3, v6, vcc
          v_subrev_u32 v5, 4608, v4
          buffer_load_dwordx4 v[{SK}:{SK+3}], v6, s[{SC}:{SC+3}], 0 offen
          s_mov_b32 s60, 0''')
    for j in range(4):
        a(f'buffer_load_dword v{KK+j}, v5, s[{SA}:{SA+3}], 0 offen offset:{1152*j}')
    a(f'buffer_load_dword v{VV}, v5, s[{SB}:{SB+3}], 0 offen offset:3456')
    for q in range(4):
        for j in range(4):
            a(f'buffer_load_dword v{KK+4+4*q+j}, v4, s[{SA}:{SA+3}], s60 offen offset:{1152*j}')
            a(f'buffer_load_dword v{VV+1+4*q+j}, v4, s[{SB}:{SB+3}], s60 offen offset:{1152*j}')
        a('s_add_u32 s60, s60, 4608')
    a('''s_waitcnt vmcnt(38)
         ds_write_b32 v19, v18 offset:160''')
    if not FINE: a.stamp(3)
    L_ST = KV_BYTES
    a(f'''s_lshl_b32 s60, s6, 5
          s_sub_u32 s60, {L_ST + 96}, s60
          v_mul_u32_u24 v4, 288, v0
          v_add_u32 v4, s60, v4
          s_waitcnt vmcnt(0)''')
    X, S8, P = 64, 138, 20
    for j in range(37):
        a(f'v_lshlrev_b32 v{X+2*j}, 16, v{KK+j}')
        a(f'v_and_b32 v{X+2*j+1}, 0xffff0000, v{KK+j}')
    for i in range(4):
        src0, src1 = SK + (i >> 1), SK + 2 + (i >> 1)
        if i & 1:
            a(f'v_and_b32 v{S8+2*i}, 0xffff0000, v{src0}')
            a(f'v_and_b32 v{S8+2*i+1}, 0xffff0000, v{src1}')
        else:
            a(f'v_lshlrev_b32 v{S8+2*i}, 16, v{src0}')
            a(f'v_lshlrev_b32 v{S8+2*i+1}, 16, v{src1}')
    TMP = 146
    for tau in range(17):
        t = TMP + 2 * (tau % 4)
        a(f'v_pk_mul_f32 {vr(t,2)}, {vr(S8,2)}, {vr(X+2*(tau+3),2)}')
        for i in range(1, 4):
            a(f'v_pk_fma_f32 {vr(t,2)}, {vr(S8+2*i,2)}, {vr(X+2*(tau+3-i),2)}, {vr(t,2)}')
        u = X + 2 * (20 + tau)
        a(f'v_pk_mul_f32 {vr(u,2)}, {vr(t,2)}, {vr(u,2)}')
    for ch in range(2):
        U = lambda tau: X + 2 * (20 + tau) + ch
        for d in range(8):
            a(f'v_cvt_pk_bf16_f32 v{P+8*ch+d}, v{U(16-2*d)}, v{U(15-2*d)}')
    a(f'v_cvt_pk_bf16_f32 v36, v{X+40}, v{X+41}')
    a(f'''v_cmp_gt_u32 vcc, 36, v0
          s_and_saveexec_b64 s[62:63], vcc
          ds_write_b128 v4, {vr(P,4)}
          ds_write_b128 v4, {vr(P+4,4)} offset:16
          ds_write_b128 v4, {vr(P+8,4)} offset:144
          ds_write_b128 v4, {vr(P+12,4)} offset:160
          s_cmp_eq_u32 s6, 0
          s_cbranch_scc0 L_a_nx64
          ds_write_b16 v4, v36 offset:32
          ds_write_b16_d16_hi v4, v36 offset:176
          L_a_nx64:
          s_mov_b64 exec, s[62:63]
          s_waitcnt lgkmcnt(0)
          ds_write_b32 v19, v18 offset:96
          s_mul_i32 s60, s5, 72
          s_mul_i32 s61, s6, 18
          s_add_u32 s60, s60, s61
          s_mul_i32 s60, s60, {UR_CH}
          s_lshl_b32 s62, s4, 7
          s_sub_u32 s60, s60, s62
          s_add_u32 s60, s60, {WS_UR + 3968}
          s_add_u32 s62, s60, {UR_COPY}
          s_mul_i32 s61, s61, 144
          s_add_u32 s61, s61, {L_ST}
          v_lshrrev_b32 v5, 3, v0
          v_and_b32 v6, 7, v0
          v_lshlrev_b32 v6, 4, v6
          v_mul_u32_u24 v7, 144, v5
          v_add3_u32 v7, v7, v6, s61
          v_mul_u32_u24 v8, {UR_CH}, v5
          v_add_u32 v8, v8, v6
          v_add_u32 v9, {8*UR_CH}, v8
          v_add_u32 v10, {16*UR_CH}, v8
          v_cmp_gt_u32 vcc, 16, v0
          s_nop 1
          v_cndmask_b32 v10, v3, v10, vcc''')
    lds_wait(a, 2, 96, 40, 66)
    for m in range(3):
        a(f'ds_read_b128 {vr(40+8*m,4)}, v7 offset:{1152*m}')
        a(f'ds_read_b128 {vr(44+8*m,4)}, v7 offset:{1152*m+2}')
    for m in range(3):
        a(f'''s_waitcnt lgkmcnt({4-2*m})
              buffer_store_dwordx4 {vr(40+8*m,4)}, v{8+m}, s[{WS}:{WS+3}], s60 offen sc1
              buffer_store_dwordx4 {vr(44+8*m,4)}, v{8+m}, s[{WS}:{WS+3}], s62 offen sc1''')
    a(f'''ds_write_b32 v19, v18 offset:112
          v_mov_b32 v64, 0
          v_mov_b32 v65, 0
          v_mov_b32 v66, 0
          v_mov_b32 v67, 0
          s_cmp_eq_u32 s4, 0
          s_cbranch_scc0 L_a_nopad''')
    for m in range(3):
        a(f'buffer_store_dwordx4 v[64:67], v{8+m}, s[{WS}:{WS+3}], s60 offen offset:128 sc1')
        a(f'buffer_store_dwordx4 v[64:67], v{8+m}, s[{WS}:{WS+3}], s62 offen offset:128 sc1')
    a('L_a_nopad:')
    FR0, ACC = 40, 20
    aA, aB, aB0, aU, aY, aS, aR, DV = 4, 5, 6, 10, 11, 12, 13, 14
    a(f'''v_and_b32 v24, 15, v0
          v_bfe_u32 v25, v0, 4, 1
          v_lshrrev_b32 v23, 5, v0
          v_and_b32 v26, 7, v0
          v_bfe_u32 v27, v0, 3, 1
          v_lshl_or_b32 v26, v26, 1, v27
          v_lshlrev_b32 v21, 3, v25
          v_lshlrev_b32 v20, 4, v23
          v_sub_u32 v21, v21, v20
          v_sub_u32 v21, v21, v26
          v_add_u32 v21, 2047, v21
          v_lshlrev_b32 v21, 1, v21
          v_xor_b32 v20, 1, v27
          v_mul_u32_u24 v20, {UR_COPY-2}, v20
          v_add_u32 v21, v21, v20
          s_and_b32 s60, s6, 1
          s_lshl_b32 s60, s60, 8
          s_add_u32 s61, s60, {64*59}
          v_subrev_u32 v{aA}, s61, v21
          v_sub_u32 v21, v24, v23
          v_lshlrev_b32 v21, 5, v21
          v_lshl_add_u32 v21, v25, 4, v21
          v_subrev_u32 v{aB0}, s60, v21
          v_subrev_u32 v{aB0+1}, 64, v{aB0}
          v_subrev_u32 v{aB0+2}, 128, v{aB0}
          v_subrev_u32 v{aB0+3}, 192, v{aB0}
          v_add_u32 v{aB}, 320, v{aB0}
          v_lshl_or_b32 v21, v25, 1, v23
          v_lshlrev_b32 v21, 3, v21
          v_lshl_add_u32 v{aY}, v24, 5, v21
          v_sub_u32 v{aU}, {4088-3584}, v{aY}
          v_add_u32 v{aS}, {L_ST}, v1
          s_xor_b32 s60, s39, 4
          v_add_u32 v{aR}, s60, v2
          s_waitcnt vmcnt(0)
          ds_write_b32 v19, v18 offset:208
          s_cmp_eq_u32 s6, 0
          s_cbranch_scc0 L_a_nsig2''')
    lds_wait(a, 2, 208, 40, 66)
    a(f'''buffer_store_dword v18, v17, s[{WS}:{WS+3}], s65 offen sc1
          L_a_nsig2:''')
    CST = os.environ.get('CST')
    a.stamp(1 if CST else 4)
    lds_wait(a, 2, 112, 40, 66)
    a.srd(SC, 28, 1152)
    a(f'''s_mov_b32 s68, 0
          s_cmp_lt_u32 s4, 8
          s_cselect_b32 s69, 3, 2
          {'s_mov_b32 s69, 0' if os.environ.get('NOCONV') else ''}
          s_cmp_eq_u32 s69, 0
          s_cbranch_scc1 L_a_repack
          L_a_job:
          s_mul_i32 s64, s5, 72
          s_add_u32 s64, s64, s4
          s_lshl_b32 s60, s68, 5
          s_add_u32 s64, s64, s60
          s_lshl_b32 s60, s64, 12
          s_add_u32 s{SA}, s26, s60
          s_addc_u32 s{SA+1}, s27, 0
          s_and_b32 s{SA+1}, s{SA+1}, 0xffff
          s_mov_b32 s{SA+2}, 4096
          s_mov_b32 s{SA+3}, 0x00020000
          s_add_u32 s67, s60, {WS_Y}
          s_mul_i32 s60, s64, {UR_CH}
          s_add_u32 s60, s60, {WS_UR}
          s_add_u32 s{SB}, s36, s60
          s_addc_u32 s{SB+1}, s37, 0
          s_and_b32 s{SB+1}, s{SB+1}, 0xffff
          s_mov_b32 s{SB+2}, {UR_CH}
          s_mov_b32 s{SB+3}, 0x00020000
          s_lshl_b32 s60, s64, 1
          v_mov_b32 v21, s60
          buffer_load_ushort v{DV}, v21, s[{SC}:{SC+3}], 0 offen
          s_cmp_eq_u32 s68, 0
          s_cbranch_scc0 L_a_uok
          buffer_load_dwordx4 v[40:43], v1, s[{SA}:{SA+3}], 0 offen
          buffer_load_dwordx4 v[44:47], v1, s[{SA}:{SA+3}], 0 offen offset:1024
          buffer_load_dwordx4 v[48:51], v1, s[{SA}:{SA+3}], 0 offen offset:2048
          buffer_load_dwordx4 v[52:55], v1, s[{SA}:{SA+3}], 0 offen offset:3072
          s_cmp_eq_u32 s6, 0
          s_cbranch_scc0 L_a_uw
          v_bfe_u32 v21, v0, 1, 2
          v_lshlrev_b32 v21, 7, v21
          v_and_b32 v24, 1, v0
          v_lshl_add_u32 v21, v24, 4, v21
          s_lshl_b32 s60, s5, 9
          s_add_u32 s60, s60, {WS_FL+4096}
          s_mov_b32 s66, {SPIN}
          L_a_upoll:
          buffer_load_dwordx4 v[24:27], v21, s[{WS}:{WS+3}], s60 offen sc1
          s_waitcnt vmcnt(0)
          v_and_b32 v24, v24, v25
          v_and_b32 v26, v26, v27
          v_and_b32 v24, v24, v26
          v_cmp_ne_u32 vcc, 1, v24
          s_cbranch_vccz L_a_uok2
          s_sleep 8
          s_sub_u32 s66, s66, 1
          s_cmp_lg_u32 s66, 0
          s_cbranch_scc1 L_a_upoll
          L_a_uok2:
          ds_write_b32 v19, v18 offset:224
          L_a_uw:''')
    lds_wait(a, 2, 224, 24, 66, n=1, sleep=8)
    a(f'''{'s_memtime s[88:89]' if CST else ''}
          {'s_waitcnt lgkmcnt(0)' if CST else ''}
          L_a_uok:
          s_add_u32 s68, s68, 1
          s_cmp_ge_u32 s6, 2
          s_cbranch_scc1 L_a_cY''')
    for half, cset in ((0, [7, 6, 2]), (1, [5, 4, 3, 1, 0])):
        if half == 1:
            a('L_a_cY:')
        nf = max(cset) + 1
        slot = {c: ACC + 4 * k for k, c in enumerate(cset)}

        def floads(rr):
            fa, fb = FR0 + 64 * (rr & 1), FR0 + 64 * (rr & 1) + 32
            for i in range(nf):
                a(f'buffer_load_dwordx4 {vr(fa+4*i,4)}, v{aA}, s[{SB}:{SB+3}], 0 offen offset:{64*(56-8*i)+64*(3-rr)}')
                if i == 0:
                    a(f'buffer_load_dwordx4 {vr(fb,4)}, v{aB0+rr}, s[{SA}:{SA+3}], 0 offen')
                else:
                    a(f'buffer_load_dwordx4 {vr(fb+4*i,4)}, v{aB}, s[{SA}:{SA+3}], 0 offen offset:{512*(i-1)+64*(3-rr)}')
        floads(0)
        for rr in range(4):
            if rr < 3:
                floads(rr + 1)
                a(f's_waitcnt vmcnt({2*nf})')
            else:
                a('s_waitcnt vmcnt(0)')
            a(f"s_setprio {os.environ.get('CPRIO', '0')}")
            fa, fb = FR0 + 64 * (rr & 1), FR0 + 64 * (rr & 1) + 32
            for i in range(nf):
                for c in cset:
                    d = c - i
                    if d < 0:
                        continue
                    cin = '0' if (rr == 0 and i == 0) else vr(slot[c], 4)
                    a(f'v_mfma_f32_16x16x32_bf16 {vr(slot[c],4)}, {vr(fa+4*i,4)}, {vr(fb+4*d,4)}, {cin}')
            a('s_setprio 3')
        if CST:
            a(f'''s_cmp_eq_u32 s68, 1
                  s_cbranch_scc0 L_cst{half}''')
            a.stamp(3)
            a(f'L_cst{half}:')
        a(f'''s_sub_u32 s70, s68, 1
              v_lshlrev_b32 v{DV}, 16, v{DV}
              v_mov_b32 v15, s68''')
        lds_wait(a, aR, 192, 40, 66, n=1, val='s70')
        a(f'''s_bitcmp1_b32 s6, 0
              s_cbranch_scc1 L_a_x{half}1''')
        lists = {0: ([7, 2], [6]), 1: ([5, 4, 3], [1, 0])}[half]
        for odd in range(2):
            keep, send = (lists[0], lists[1]) if odd == 0 else (lists[1], lists[0])
            if odd == 1:
                a(f'L_a_x{half}1:')
            for c in send:
                a(f'ds_write_b128 v{aS}, {vr(slot[c],4)} offset:{1024*c}')
            for k, c in enumerate(keep):
                a(f'buffer_load_dwordx2 {vr(64+2*k,2)}, v{aU}, s[{SB}:{SB+3}], 0 offen offset:{512*(7-c)}')
            a('''s_waitcnt lgkmcnt(0)
                 ds_write_b32 v19, v15 offset:176''')
            lds_wait(a, aR, 176, 40, 66, n=1, val='s68')
            for k, c in enumerate(keep):
                a(f'ds_read_b128 {vr(44+4*k,4)}, v{aS} offset:{1024*c}')
            a('''s_waitcnt lgkmcnt(0)
                 ds_write_b32 v19, v15 offset:192
                 s_waitcnt vmcnt(0)''')
            for k, c in enumerate(keep):
                x, u = slot[c], 64 + 2 * k
                for r in range(4):
                    a(f'v_add_f32 v{x+r}, v{x+r}, v{44+4*k+r}')
                a(f'''v_and_b32 v72, 0xffff0000, v{u+1}
                      v_lshlrev_b32 v73, 16, v{u+1}
                      v_permlane32_swap_b32 v{x}, v{x+2}
                      v_permlane32_swap_b32 v{x+1}, v{x+3}
                      v_and_b32 v74, 0xffff0000, v{u}
                      v_lshlrev_b32 v75, 16, v{u}
                      v_fmac_f32 v{x}, v{DV}, v72
                      v_fmac_f32 v{x+2}, v{DV}, v73
                      v_fmac_f32 v{x+1}, v{DV}, v74
                      v_fmac_f32 v{x+3}, v{DV}, v75
                      v_cvt_pk_bf16_f32 v{x}, v{x}, v{x+2}
                      v_cvt_pk_bf16_f32 v{x+1}, v{x+1}, v{x+3}
                      buffer_store_dwordx2 {vr(x,2)}, v{aY}, s[{WS}:{WS+3}], s67 offen offset:{512*c}''')
            a('s_branch L_a_jend')
    a('L_a_jend:')
    if CST:
        a('''s_cmp_eq_u32 s68, 1
             s_cbranch_scc0 L_cst2''')
        a.stamp(4)
        a('L_cst2:')
    a('''
         s_cmp_lt_u32 s68, s69
         s_cbranch_scc1 L_a_job''')
    a('''L_a_repack:
         s_cmp_eq_u32 s6, 3
         s_cbranch_scc0 L_a_hend''')
    a.srd(SA, 16, 663552)
    a(f'''s_mul_i32 s60, s4, 18
          s_mul_i32 s61, s5, 82944
          s_mul_i32 s62, s4, 2592
          s_add_u32 s61, s61, s62
          s_add_u32 s61, s61, {WS_WO}''')
    for m in range(3):
        a(f'''v_add_u32 v8, {64*m}, v0
              v_mul_u32_u24 v9, 7282, v8
              v_lshrrev_b32 v9, 16, v9
              v_mul_u32_u24 v10, 9, v9
              v_sub_u32 v10, v8, v10
              v_lshlrev_b32 v10, 4, v10
              v_add_u32 v9, s60, v9
              v_lshrrev_b32 v11, 4, v9
              v_mul_u32_u24 v11, 18, v11
              v_bfe_u32 v12, v9, 3, 1
              v_lshl_add_u32 v11, v12, 2, v11
              v_and_b32 v12, 1, v9
              v_lshl_add_u32 v11, v12, 3, v11
              v_bfe_u32 v13, v9, 1, 2
              v_add_u32 v11, v11, v13
              v_bfe_u32 v14, v9, 3, 3
              v_lshlrev_b32 v14, 2, v14
              v_lshl_add_u32 v14, v12, 1, v14
              v_lshrrev_b32 v12, 1, v13
              v_add_u32 v14, v14, v12
              v_mul_u32_u24 v14, 18, v14
              v_and_b32 v13, 1, v13
              v_add3_u32 v14, v14, v13, 16
              v_cmp_lt_u32 vcc, 511, v9
              v_lshlrev_b32 v{16+m}, 4, v8
              s_nop 0
              v_cndmask_b32 v11, v11, v14, vcc
              v_mul_u32_u24 v11, 1152, v11
              v_add3_u32 v11, v11, v10, s19
              v_cmp_gt_u32 vcc, 162, v8
              s_nop 1
              v_cndmask_b32 v11, v3, v11, vcc
              v_cndmask_b32 v{16+m}, v3, v{16+m}, vcc
              buffer_load_dwordx4 {vr(20+4*m,4)}, v11, s[{SA}:{SA+3}], 0 offen''')
    for m in range(3):
        a(f'''s_waitcnt vmcnt({2-m+m})
              buffer_store_dwordx4 {vr(20+4*m,4)}, v{16+m}, s[{WS}:{WS+3}], s61 offen''')
    a('L_a_hend:')
    a.stamp_out(0, WS)
    a('L_a_exit:\ns_endpgm')
    return a.text(), dict(name='ka_kernel', grid=256, block=768, lds=LDS, vgpr=168, sgpr=102)


def gen_kb():
    a = Asm()
    L_W = 0
    L_S = 82944
    L_FL = L_S + 4 * 6144
    LDS = L_FL + 64
    WS, SX, SO = 40, 44, 52
    a('kb_kernel:')
    a.stamp(0); a.stamp(5, True)
    a(f'''s_cmp_ge_u32 s2, 256
          s_cbranch_scc1 L_b_exit
          s_load_dwordx2 s[36:37], s[0:1], 112
          s_load_dwordx2 s[8:9], s[0:1], 0
          s_load_dwordx2 s[12:13], s[0:1], 96
          v_lshrrev_b32 v1, 6, v0
          v_and_b32 v0, 63, v0
          v_readfirstlane_b32 s3, v1
          v_mov_b32 v2, {L_FL}
          v_and_b32 v4, 15, v0
          v_lshl_add_u32 v5, v4, 2, v2
          v_mov_b32 v6, 0
          ds_write_b32 v5, v6
          s_and_b32 s4, s2, 7
          s_lshr_b32 s5, s2, 6
          s_lshl_b32 s5, s5, 3
          s_or_b32 s4, s4, s5
          s_lshr_b32 s5, s2, 3
          s_and_b32 s5, s5, 7
          s_and_b32 s6, s3, 3
          s_mul_i32 s18, s4, 73728
          s_mul_i32 s19, s5, 144
          v_lshlrev_b32 v1, 4, v0
          s_mul_i32 s60, s6, 18432
          s_add_u32 s18, s18, s60
          s_cmp_ge_u32 s3, 4
          s_cbranch_scc1 L_b_load''')
    OF = 96
    a(f'''s_add_u32 s60, s18, {WS_O}
          s_add_u32 s61, s60, 4096
          s_add_u32 s62, s60, 8192
          s_add_u32 s63, s60, 12288
          s_add_u32 s64, s60, 16384
          s_waitcnt lgkmcnt(0)''')
    a.srd(WS, 36, WS_SIZE)
    for ks in range(18):
        a(f'buffer_load_dwordx4 {vr(OF+4*ks,4)}, v1, s[{WS}:{WS+3}], s{60+ks//4} offen offset:{1024*(ks%4)}')
    a('s_barrier')
    a.srd(SX, 8, 2359296)
    a.srd(SO, 12, 2359296)
    a(f'''v_mov_b32 v3, {OOB}
          s_mul_i32 s65, s6, 6144
          s_add_u32 s65, s65, {L_S}
          s_mul_i32 s60, s5, {72*4096}
          s_lshl_b32 s61, s4, 7
          s_add_u32 s60, s60, s61
          s_lshl_b32 s61, s6, 5
          s_add_u32 s60, s60, s61
          s_add_u32 s60, s60, {WS_Y}''')
    XA = 84
    for m in range(3):
        a(f'''v_add_u32 v8, {64*m}, v0
              v_mul_u32_u24 v9, 7282, v8
              v_lshrrev_b32 v9, 16, v9
              v_mul_u32_u24 v10, 9, v9
              v_sub_u32 v10, v8, v10
              v_lshlrev_b32 v10, 4, v10
              v_mul_u32_u24 v9, 1152, v9
              v_add3_u32 v{XA+m}, v9, v10, s19
              v_lshrrev_b32 v9, 1, v8
              v_and_b32 v10, 1, v8
              v_lshlrev_b32 v10, 4, v10
              v_cmp_gt_u32 vcc, 144, v8
              v_lshl_add_u32 v9, v9, 12, v10
              s_add_u32 s61, s65, {1024*m}
              v_cndmask_b32 v{XA+m}, v3, v{XA+m}, vcc
              v_cndmask_b32 v9, v3, v9, vcc
              s_mov_b32 m0, s61
              s_add_u32 s61, s61, 3072
              buffer_load_dwordx4 v{XA+m}, s[{SX}:{SX+3}], s18 offen lds
              s_mov_b32 m0, s61
              s_nop 0
              buffer_load_dwordx4 v9, s[{WS}:{WS+3}], s60 offen lds''')
    GV = 87
    a(f'''s_lshl_b32 s60, s4, 8
          s_lshl_b32 s61, s6, 6
          s_add_u32 s60, s60, s61
          s_add_u32 s60, s60, {WS_G}
          v_lshlrev_b32 v11, 2, v4
          buffer_load_dword v{GV}, v11, s[{WS}:{WS+3}], s60 offen
          s_mov_b32 s60, 0''')
    addr_trW(a, 14, L_W, 60, 10, 11)
    a(f'''v_add_u32 v15, {9*4608}, v14
          v_mul_u32_u24 v88, 144, v4
          v_lshrrev_b32 v11, 4, v0
          v_lshl_add_u32 v88, v11, 3, v88
          v_add_u32 v88, s65, v88
          v_lshlrev_b32 v89, 3, v0
          v_add_u32 v89, s65, v89
          v_add_u32 v90, s65, v1''')
    a.stamp(1)

    def gateB(ks):
        if ks % 6 == 0:
            lds_wait(a, 2, 16 * (ks // 6), 4, 66)
            if ks == 0:
                a('s_waitcnt vmcnt(7)')
                a.stamp(2)
            return True
        return False
    gemm5(a, 32, 8, 64, lambda ks, x: ((14, ks * 4608 + 32 * x) if ks < 9 else (15, (ks - 9) * 4608 + 32 * x)),
          lambda ks: OF + 4 * ks, lambda ks: None, gateB, look=6)
    a.stamp(3)
    a('s_waitcnt vmcnt(0)')
    for x in range(5):
        a(f'ds_read_b64 {vr(20+2*x,2)}, v88 offset:{32*x}')
        a(f'ds_read_b64_tr_b16 {vr(32+2*x,2)}, v89 offset:{3072+512*x}')
    a(f'v_sub_f32 v91, 1.0, v{GV}')
    for x in range(5):
        acc = 64 + 4 * x
        a(f's_waitcnt lgkmcnt({8-2*x+(x if x else 0)})' if False else f's_waitcnt lgkmcnt({8-2*x+x})')
        for r in range(4):
            xs, ys = 20 + 2 * x + (r >> 1), 32 + 2 * x + (r >> 1)
            t = 8 + 2 * (r & 1)
            if r & 1:
                a(f'v_and_b32 v{t}, 0xffff0000, v{xs}')
                a(f'v_and_b32 v{t+1}, 0xffff0000, v{ys}')
            else:
                a(f'v_lshlrev_b32 v{t}, 16, v{xs}')
                a(f'v_lshlrev_b32 v{t+1}, 16, v{ys}')
            a(f'''v_mul_f32 v{t}, v{t}, v{t+1}
                  v_mul_f32 v{t}, v{t}, v91
                  v_fma_f32 v{acc+r}, v{GV}, v{acc+r}, v{t}''')
        a(f'''v_cvt_pk_bf16_f32 v{acc}, v{acc}, v{acc+1}
              v_cvt_pk_bf16_f32 v{acc+1}, v{acc+2}, v{acc+3}''')
        if x == 4:
            a(f'''v_cmp_gt_u32 vcc, 32, v0
                  s_and_saveexec_b64 s[62:63], vcc
                  ds_write_b64 v88, {vr(acc,2)} offset:{32*x}
                  s_mov_b64 exec, s[62:63]''')
        else:
            a(f'ds_write_b64 v88, {vr(acc,2)} offset:{32*x}')
    for m in range(3):
        a(f'ds_read_b128 {vr(20+4*m,4)}, v90 offset:{1024*m}')
    for m in range(3):
        a(f'''s_waitcnt lgkmcnt({2-m})
              buffer_store_dwordx4 {vr(20+4*m,4)}, v{XA+m}, s[{SO}:{SO+3}], s18 offen''')
    a.stamp(4)
    a.stamp_out(1, WS)
    if STAMPS:
        WGD = int(os.environ.get('WGD', '0'))
        a(f'''s_cmp_eq_u32 s2, {WGD}
              s_cbranch_scc0 L_b_nodbg
              s_cmp_eq_u32 s3, 0
              s_cbranch_scc0 L_b_nodbg
              s_load_dwordx2 s[34:35], s[0:1], 104
              v_lshlrev_b32 v4, 2, v0
              v_cmp_gt_u32 vcc, 8, v0
              v_add_u32 v5, {8*32}, v4
              v_add_u32 v6, {4*32-32}, v4
              v_cndmask_b32 v5, v6, v5, vcc
              s_mov_b32 s60, {WS_DBG + WGD*16*32}
              buffer_load_dword v7, v5, s[{WS}:{WS+3}], s60 offen
              s_waitcnt vmcnt(0) lgkmcnt(0)''')
        a.srd(56, 34, 64)
        a(f'''v_mov_b32 v8, s94
              v_mov_b32 v9, s96
              v_cmp_eq_u32 vcc, 13, v0
              s_nop 1
              v_cndmask_b32 v7, v7, v8, vcc
              v_cmp_eq_u32 vcc, 15, v0
              s_nop 1
              v_cndmask_b32 v7, v7, v9, vcc
              buffer_store_dword v7, v4, s[56:59], 0 offen
              L_b_nodbg:''')
    a('s_endpgm')
    a('L_b_load:')
    a(f'''s_mul_i32 s62, s5, 82944
          s_add_u32 s62, s62, {WS_WO}
          s_lshl_b32 s63, s6, 10
          s_min_u32 s64, s6, 2
          s_lshl_b32 s64, s64, 10
          s_lshl_b32 s60, s6, 2
          v_add_u32 v19, s60, v2
          v_mov_b32 v18, 1
          s_waitcnt lgkmcnt(0)''')
    a.srd(WS, 36, WS_SIZE)
    a('s_barrier')

    def chunk(c):
        for m in range(7):
            a(f'''s_add_u32 s60, s{63 if m < 6 else 64}, {(27*c+4*m)*1024}
                  s_mov_b32 m0, s60
                  s_add_u32 s61, s60, s62
                  buffer_load_dwordx4 v1, s[{WS}:{WS+3}], s61 offen lds''')
    chunk(0); chunk(1)
    a('s_waitcnt vmcnt(7)\nds_write_b32 v19, v18')
    chunk(2)
    a('s_waitcnt vmcnt(7)\nds_write_b32 v19, v18 offset:16')
    a('s_waitcnt vmcnt(0)\nds_write_b32 v19, v18 offset:32')
    a.stamp_out(1, WS)
    a('L_b_exit:\ns_endpgm')
    return a.text(), dict(name='kb_kernel', grid=256, block=512, lds=LDS, vgpr=168, sgpr=102)


def main(out_path):
    ref = open(os.path.join(os.path.dirname(os.path.abspath(__file__)), '..', 'cdna_kernels', NAME + '.s.ref')).read()
    head = [l for l in ref.split('\n') if l.startswith(';') and '@launch' not in l and 'Override launch' not in l
            and 'grid=ceil' not in l]
    kernels = [gen_ka(), gen_kb()]
    s = '\n'.join(head) + '\n'
    for _, k in kernels:
        s += f"; @launch kernel={k['name']} grid=({k['grid']},1,1) block=({k['block']},1,1) lds={k['lds']}\n"
    s += '.amdgcn_target "amdgcn-amd-amdhsa--gfx950"\n.text\n'
    for t, k in kernels:
        s += f".globl {k['name']}\n.p2align 8\n.type {k['name']},@function\n" + t
    s += '.section .rodata,"a"\n'
    for _, k in kernels:
        s += f'''.p2align 6
.amdhsa_kernel {k['name']}
  .amdhsa_next_free_vgpr {k['vgpr']}
  .amdhsa_next_free_sgpr {k['sgpr']}
  .amdhsa_accum_offset {k['vgpr']}
  .amdhsa_group_segment_fixed_size 0
  .amdhsa_kernarg_size 120
  .amdhsa_user_sgpr_count 2
  .amdhsa_user_sgpr_kernarg_segment_ptr 1
  .amdhsa_system_sgpr_workgroup_id_x 1
.end_amdhsa_kernel
'''
    open(out_path, 'w').write(s)


if __name__ == '__main__':
    main(sys.argv[1] if len(sys.argv) > 1 else os.path.join(os.path.dirname(os.path.abspath(__file__)), '..', 'cdna_kernels', NAME + '.s'))
```

```python
import sys
src = open('v3b.s').read()
la = [l for l in src.split('\n') if '@launch kernel=ka' in l][0]
def build(name, body, block=256):
    e = src.replace(la, f'; @launch kernel=k4_kernel grid=(256,1,1) block=({block},1,1) lds=0\n'+la)
    e = e.replace('.section .rodata', '.globl k4_kernel\n.p2align 8\n.type k4_kernel,@function\nk4_kernel:\n    s_cmp_ge_u32 s2, 256\n    s_cbranch_scc1 L_t_end\n'+body+'\n    s_waitcnt vmcnt(0)\nL_t_end:\n    s_endpgm\n.section .rodata', 1)
    e += '''.p2align 6
.amdhsa_kernel k4_kernel
  .amdhsa_next_free_vgpr 64
  .amdhsa_next_free_sgpr 64
  .amdhsa_accum_offset 64
  .amdhsa_group_segment_fixed_size 0
  .amdhsa_kernarg_size 120
  .amdhsa_user_sgpr_count 2
  .amdhsa_user_sgpr_kernarg_segment_ptr 1
  .amdhsa_system_sgpr_workgroup_id_x 1
.end_amdhsa_kernel
'''
    open(name, 'w').write(e)
def srd(off, nbytes):
    return f'''    s_load_dwordx2 s[4:5], s[0:1], {off}
    s_waitcnt lgkmcnt(0)
    s_mov_b32 s8, s4
    s_and_b32 s9, s5, 0xffff
    s_mov_b32 s10, {nbytes}
    s_mov_b32 s11, 0x00020000
'''
tl = '    s_lshr_b32 s12, s2, 3\n    s_lshl_b32 s12, s12, 8\n    v_add_u32 v1, s12, v0\n    v_lshlrev_b32 v1, 12, v1\n'
inputs = [(0,2359296),(8,663552),(16,20736),(24,20736),(32,663552),(48,2359296),(56,2359296),(64,4608),(72,2359296),(80,1152),(88,1152),(96,2359296)]
b = tl
for i,(o,n) in enumerate(inputs): b += srd(o,n) + f'    buffer_load_dword v{2+i}, v1, s[8:11], 0 offen\n'
build('t_tlb_in.s', b)
b2 = b + srd(112, 0xC00000) + '    buffer_load_dword v20, v1, s[8:11], 0 offen\n' + srd(104,256) + '    buffer_load_dword v21, v1, s[8:11], 0 offen\n'
build('t_tlb_all.s', b2)
fl = '    s_lshl_b32 s12, s2, 8\n    v_add_u32 v1, s12, v0\n    v_lshlrev_b32 v1, 4, v1\n    s_mov_b32 s13, 0x100000\n    s_mov_b32 s14, 0x200000\n'
b3 = fl
r = 4
for (o,n) in inputs[:-1]:
    b3 += srd(o,n)
    for k,so in enumerate(('0','s13','s14')):
        if k*0x100000 < n:
            b3 += f'    buffer_load_dwordx4 v[{r}:{r+3}], v1, s[8:11], {so} offen\n'; r = 4 + (r % 56)
build('t_data.s', b3)
b4 = '''    s_getpc_b64 s[4:5]
    s_sub_u32 s4, s4, 0x6000
    s_subb_u32 s5, s5, 0
    s_lshr_b32 s12, s2, 3
    s_lshl_b32 s12, s12, 8
    v_add_u32 v1, s12, v0
    v_min_u32 v1, 6143, v1
    v_lshlrev_b32 v1, 2, v1
    global_load_dword v2, v1, s[4:5]
'''
build('t_code.s', b4)
build('t_all.s', b4 + b2 + b3)
```

```python
import os, subprocess, sys
g = open('gen3.py').read().replace("op = 's_memrealtime' if real else 's_memtime'", "op = 's_memrealtime'")
open('gen3_rt.py','w').write(g)
env = dict(os.environ, STAMPS='1', MAINST='1', CPRIO='3')
subprocess.check_call(['python3','gen3_rt.py','rt.s'], env=env)
src = open('rt.s').read()
lb = [l for l in src.split('\n') if '@launch kernel=kb' in l][0]
WS_DBG = 0xC00000
def slot(k, wg, wave, i): return WS_DBG + ((k*256+wg)*16+wave)*32 + 4*i
def build(name, a, b, opa='max'):
    body = f'''    s_cmp_ge_u32 s2, 1
    s_cbranch_scc1 L_t_end
    s_memrealtime s[16:17]
    s_load_dwordx2 s[4:5], s[0:1], 112
    s_waitcnt lgkmcnt(0)
    s_mov_b32 s8, s4
    s_and_b32 s9, s5, 0xffff
    s_mov_b32 s10, 0x1000000
    s_mov_b32 s11, 0x00020000
    v_lshlrev_b32 v1, 9, v0
    v_add_u32 v2, {b}, v1
    v_add_u32 v1, {a}, v1
    s_mov_b32 s20, 32768
    s_mov_b32 s21, 65536
    s_mov_b32 s22, 98304
    buffer_load_dword v3, v1, s[8:11], 0 offen
    buffer_load_dword v4, v1, s[8:11], s20 offen
    buffer_load_dword v5, v1, s[8:11], s21 offen
    buffer_load_dword v6, v1, s[8:11], s22 offen
    buffer_load_dword v7, v2, s[8:11], 0 offen
    buffer_load_dword v8, v2, s[8:11], s20 offen
    buffer_load_dword v9, v2, s[8:11], s21 offen
    buffer_load_dword v10, v2, s[8:11], s22 offen
    s_waitcnt vmcnt(0)
    v_{opa}_u32 v3, v3, v4
    v_{opa}_u32 v5, v5, v6
    v_{opa}_u32 v3, v3, v5
    v_min_u32 v7, v7, v8
    v_min_u32 v9, v9, v10
    v_min_u32 v7, v7, v9
    s_nop 1
    v_readlane_b32 s14, v3, 0
    v_readlane_b32 s15, v7, 0
    s_mov_b32 s23, 1
L_t_red:
    v_readlane_b32 s24, v3, s23
    v_readlane_b32 s25, v7, s23
    s_{opa}_u32 s14, s14, s24
    s_min_u32 s15, s15, s25
    s_add_u32 s23, s23, 1
    s_cmp_lt_u32 s23, 64
    s_cbranch_scc1 L_t_red
    s_sub_u32 s12, s14, s15
    s_min_u32 s12, s12, 10000
    s_add_u32 s12, s12, 600
L_t_spin:
    s_memrealtime s[18:19]
    s_waitcnt lgkmcnt(0)
    s_sub_u32 s13, s18, s16
    s_cmp_lt_u32 s13, s12
    s_cbranch_scc1 L_t_spin
'''
    e = src.replace(lb, lb + '\n; @launch kernel=k4_kernel grid=(1,1,1) block=(64,1,1) lds=0')
    e = e.replace('.section .rodata', '.globl k4_kernel\n.p2align 8\n.type k4_kernel,@function\nk4_kernel:\n'+body+'L_t_end:\n    s_endpgm\n.section .rodata', 1)
    e += '''.p2align 6
.amdhsa_kernel k4_kernel
  .amdhsa_next_free_vgpr 16
  .amdhsa_next_free_sgpr 32
  .amdhsa_accum_offset 16
  .amdhsa_group_segment_fixed_size 0
  .amdhsa_kernarg_size 120
  .amdhsa_user_sgpr_count 2
  .amdhsa_user_sgpr_kernarg_segment_ptr 1
  .amdhsa_system_sgpr_workgroup_id_x 1
.end_amdhsa_kernel
'''
    open(name,'w').write(e)
W = 0
build('d0.s', slot(0,W,5,0), slot(0,W,5,0), 'min')
build('d1.s', slot(0,W,5,0), slot(0,W,5,0))
build('d2.s', slot(0,W,8,1), slot(0,W,5,0))
build('d3.s', slot(0,W,5,1), slot(0,W,5,0))
build('d4.s', slot(0,W,5,7), slot(0,W,5,0))
build('d5.s', slot(1,W,0,7), slot(0,W,5,0))
```

```python
import math, sys, os, struct

NAME = "gated_mix__grouped_kv_mqa__ssm_conv_h3__prompt"

WS_KV = 0
TILE_B = 2368
VG = 608
HALF_P = 74
KV_BYTES = 64 * TILE_B
WS_FL = 0x30000
WS_G = 0x280000
WS_UR = 0x290000
UR_COPY = 4224
UR_CH = 8448
WS_O = 0x740000
WS_Y = 0x980000
WS_WO = 0x40000
WS_DBG = 0xC00000
WS_SIZE = 0x1000000
OOB = 0x7FFFFF00
SPIN = 20000
STAMPS = int(os.environ.get('STAMPS', '0'))
QSCALE = (18 ** -0.5) * math.log2(math.e)


def f32bits(x):
    return struct.unpack('<I', struct.pack('<f', x))[0]


def vr(a, n):
    return f'v[{a}:{a+n-1}]' if n > 1 else f'v{a}'


class Asm:
    def __init__(self):
        self.lines = []

    def __call__(self, s):
        for ln in s.split('\n'):
            ln = ln.strip()
            if ln:
                self.lines.append(('    ' + ln) if not ln.endswith(':') else ln)

    def srd(self, d, b, nbytes):
        self(f'''s_mov_b32 s{d}, s{b}
                 s_and_b32 s{d+1}, s{b+1}, 0xffff
                 s_mov_b32 s{d+2}, {nbytes}
                 s_mov_b32 s{d+3}, 0x00020000''')

    def dma_seq(self, n, vaddr, srd, s_src, d_src, s_lds, d_lds):
        for i in range(n):
            self(f'''s_mov_b32 m0, s{s_lds}
                     s_add_u32 s{s_lds}, s{s_lds}, {d_lds}
                     buffer_load_dwordx4 v{vaddr}, s[{srd}:{srd+3}], s{s_src} offen lds
                     s_add_u32 s{s_src}, s{s_src}, {d_src}''')

    def stamp(self, i, real=False):
        if not STAMPS:
            return
        op = 's_memrealtime' if real else 's_memtime'
        self(f'''s_waitcnt lgkmcnt(0)
                 {op} s[{84+2*i}:{85+2*i}]
                 s_waitcnt lgkmcnt(0)''')

    def stamp_out(self, kidx, ws):
        if not STAMPS:
            return
        self('s_waitcnt vmcnt(0)')
        self.stamp(7); self.stamp(6, True)
        self(f'''s_lshl_b32 s82, s2, 4
                 s_add_u32 s82, s82, s3
                 s_lshl_b32 s82, s82, 5
                 s_add_u32 s82, s82, {WS_DBG + kidx*256*16*32}
                 v_mov_b32 v8, s84
                 v_mov_b32 v9, s86
                 v_mov_b32 v10, s88
                 v_mov_b32 v11, s90
                 v_mov_b32 v12, s92
                 v_mov_b32 v13, s94
                 v_mov_b32 v14, s96
                 v_mov_b32 v15, s98
                 v_mov_b32 v7, 0
                 buffer_store_dwordx4 v[8:11], v7, s[{ws}:{ws+3}], s82 offen
                 buffer_store_dwordx4 v[12:15], v7, s[{ws}:{ws+3}], s82 offen offset:16''')

    def text(self):
        return '\n'.join(self.lines) + '\n'


def gemm(a, kss, nA, R, offB, offA, depth, swapped=False, first_ks=0):
    nrd = 1 + 2 * nA
    nb = depth

    def reads(i):
        ks = kss[i]
        buf = i % nb
        reg, imm = offB(ks)
        a(f'ds_read_b128 {vr(R["B"][buf], 4)}, v{reg} offset:{imm}')
        for x in range(nA):
            d = R['A'][buf] + 4 * x
            reg, imm, dl = offA(ks, x)
            a(f'ds_read_b64_tr_b16 {vr(d, 2)}, v{reg} offset:{imm}')
            a(f'ds_read_b64_tr_b16 {vr(d+2, 2)}, v{reg} offset:{imm+dl}')

    n = len(kss)
    for i in range(min(nb - 1, n)):
        reads(i)
    for i, ks in enumerate(kss):
        buf = i % nb
        if i + nb - 1 < n:
            reads(i + nb - 1)
        later = min(n - 1, i + nb - 1) - i
        a(f's_waitcnt lgkmcnt({later*nrd})')
        for x in range(nA):
            acc = R['acc'] + 4 * x
            cin = '0' if ks == first_ks else vr(acc, 4)
            a(f'v_mfma_f32_16x16x32_bf16 {vr(acc,4)}, {vr(R["A"][buf]+4*x,4)}, {vr(R["B"][buf],4)}, {cin}')
            if swapped:
                acc = R['acc2']
                cin = '0' if ks == first_ks else vr(acc, 4)
                a(f'v_mfma_f32_16x16x32_bf16 {vr(acc,4)}, {vr(R["B"][buf],4)}, {vr(R["A"][buf]+4*x,4)}, {cin}')


def gemm5(a, Aring, nring, acc, offA, Breg, offB, gate, look=5, pre=None):
    steps = [(ks, x) for ks in range(18) for x in range(5)]
    fifo = []
    need = {}

    def issue(si):
        ks, x = steps[si]
        if x == 0:
            if gate(ks):
                fifo.clear()
            ob = offB(ks)
            if ob is not None:
                a(f'ds_read_b128 {vr(Breg(ks), 4)}, v{ob[0]} offset:{ob[1]}')
                fifo.append(('b', ks))
        d = Aring + 4 * (si % nring)
        reg, imm = offA(ks, x)
        a(f'ds_read_b64_tr_b16 {vr(d, 2)}, v{reg} offset:{imm}')
        a(f'ds_read_b64_tr_b16 {vr(d+2, 2)}, v{reg} offset:{imm+144}')
        fifo.append(('a0', si)); fifo.append(('a1', si))

    assert look < nring
    for si in range(look):
        issue(si)
    for si, (ks, x) in enumerate(steps):
        if si + look < len(steps):
            issue(si + look)
        if ('a1', si) in fifo:
            later = len(fifo) - 1 - fifo.index(('a1', si))
            assert later <= 15
            a(f's_waitcnt lgkmcnt({later})')
            del fifo[:len(fifo) - later]
        if pre is not None and x == 0:
            pre(ks)
        c = acc + 4 * x
        cin = '0' if ks == 0 else vr(c, 4)
        a(f'v_mfma_f32_16x16x32_bf16 {vr(c,4)}, {vr(Aring+4*(si%nring),4)}, {vr(Breg(ks),4)}, {cin}')


_uid = [0]


def lds_wait(a, vaddr, imm, t, s_cnt, n=4, val=None, sleep=1):
    _uid[0] += 1
    L = f'L_lw{_uid[0]}'
    a(f's_mov_b32 s{s_cnt}, {SPIN*8}')
    a(f'{L}:')
    if n == 4:
        a(f'''ds_read_b128 {vr(t,4)}, v{vaddr} offset:{imm}
              s_waitcnt lgkmcnt(0)
              v_min_u32 v{t}, v{t}, v{t+1}
              v_min3_u32 v{t}, v{t}, v{t+2}, v{t+3}''')
    else:
        a(f'''ds_read_b32 v{t}, v{vaddr} offset:{imm}
              s_waitcnt lgkmcnt(0)''')
    a(f'''v_cmp_gt_u32 vcc, {val or 1}, v{t}
          s_cbranch_vccz {L}_ok
          s_sleep {sleep}
          s_sub_u32 s{s_cnt}, s{s_cnt}, 1
          s_cmp_lg_u32 s{s_cnt}, 0
          s_cbranch_scc1 {L}
          {L}_ok:''')


def addr_wstream(a, dst, s_stream, t0, t1, t2, s_tmp):
    a(f'''s_lshl_b32 s{s_tmp}, {s_stream}, 6
          v_add_u32 v{t0}, s{s_tmp}, v0
          v_mul_u32_u24 v{t1}, 7282, v{t0}
          v_lshrrev_b32 v{t1}, 16, v{t1}
          v_mul_u32_u24 v{dst}, 9, v{t1}
          v_sub_u32 v{t0}, v{t0}, v{dst}
          v_lshlrev_b32 v{t0}, 4, v{t0}
          v_and_b32 v{dst}, 56, v{t1}
          v_and_b32 v{t2}, 1, v{t1}
          v_lshl_add_u32 v{dst}, v{t2}, 2, v{dst}
          v_bfe_u32 v{t2}, v{t1}, 1, 2
          v_add_u32 v{dst}, v{dst}, v{t2}
          v_mul_u32_u24 v{dst}, 1152, v{dst}
          v_add3_u32 v{dst}, v{dst}, v{t0}, s19''')


def addr_trW(a, dst, base_imm, s_add, t0, t1):
    a(f'''v_lshrrev_b32 v{t0}, 4, v0
          v_lshlrev_b32 v{t0}, 3, v{t0}
          v_bfe_u32 v{t1}, v0, 2, 2
          v_lshl_add_u32 v{t0}, v{t1}, 1, v{t0}
          v_mul_u32_u24 v{t0}, 144, v{t0}
          v_and_b32 v{t1}, 3, v0
          v_lshl_add_u32 v{t0}, v{t1}, 3, v{t0}
          v_add_u32 v{t0}, {base_imm}, v{t0}
          v_add_u32 v{dst}, s{s_add}, v{t0}''')


def addr_xfrag(a, dst, vn, vg, t0, s_tmp):
    a(f'''v_and_b32 v{vn}, 15, v0
          v_lshrrev_b32 v{t0}, 2, v{vn}
          v_sub_u32 v{t0}, 0, v{t0}
          v_lshrrev_b32 v{vg}, 4, v0
          v_xor_b32 v{t0}, v{t0}, v{vg}
          v_and_b32 v{t0}, 3, v{t0}
          v_lshlrev_b32 v{t0}, 4, v{t0}
          v_lshl_add_u32 v{dst}, v{vn}, 6, v{t0}
          s_mul_i32 s{s_tmp}, s6, 18432
          v_add_u32 v{dst}, s{s_tmp}, v{dst}''')


def addr_qx(a, d, col_imm, v_col0, v_n, s_base, t0, t1, t2):
    a(f'''v_add_u32 v{t0}, {col_imm}, v{v_col0}
          v_mul_u32_u24 v{t1}, 3641, v{t0}
          v_lshrrev_b32 v{t1}, 16, v{t1}
          v_mul_u32_u24 v{t2}, 18, v{t1}
          v_sub_u32 v{t2}, v{t0}, v{t2}
          v_mul_u32_u24 v{t1}, 576, v{t1}
          v_lshrrev_b32 v{t0}, 3, v{t2}
          v_lshl_add_u32 v{t0}, v{t0}, 4, v{v_n}
          v_lshlrev_b32 v{t0}, 4, v{t0}
          v_and_b32 v{d}, 7, v{t2}
          v_lshl_add_u32 v{t0}, v{d}, 1, v{t0}
          v_cmp_gt_u32 vcc, 16, v{t2}
          v_lshlrev_b32 v{d}, 2, v{v_n}
          v_add_u32 v{d}, 512, v{d}
          v_cndmask_b32 v{d}, v{d}, v{t0}, vcc
          v_add3_u32 v{d}, v{d}, v{t1}, s{s_base}''')


def gen_ka():
    a = Asm()
    L_W = 73728
    L_WC = 154112
    L_FL = 163328
    LDS = 163840
    WS, SA, SB, SC, SD = 40, 44, 48, 52, 56
    a(NAME + '_kernel:')
    a.stamp(0); a.stamp(5, True)
    a(f'''s_cmp_ge_u32 s2, 256
          s_cbranch_scc1 L_a_exit
          s_load_dwordx8 s[8:15], s[0:1], 0
          s_load_dwordx2 s[36:37], s[0:1], 112
          s_load_dwordx8 s[28:35], s[0:1], 80
          s_load_dwordx2 s[16:17], s[0:1], 32
          s_load_dwordx8 s[20:27], s[0:1], 48
          v_lshrrev_b32 v1, 6, v0
          v_and_b32 v0, 63, v0
          v_readfirstlane_b32 s3, v1
          v_mov_b32 v2, {L_FL}
          v_lshl_add_u32 v4, v0, 2, v2
          v_mov_b32 v5, 0
          ds_write_b32 v4, v5
          ds_write_b32 v4, v5 offset:256
          s_and_b32 s4, s2, 7
          s_lshr_b32 s5, s2, 6
          s_lshl_b32 s5, s5, 3
          s_or_b32 s4, s4, s5
          s_lshr_b32 s5, s2, 3
          s_and_b32 s5, s5, 7
          s_and_b32 s6, s3, 3
          s_lshr_b32 s7, s3, 2
          s_mul_i32 s18, s4, 73728
          s_mul_i32 s19, s5, 144
          v_mov_b32 v3, {OOB}
          v_lshlrev_b32 v1, 4, v0
          s_lshl_b32 s39, s6, 2
          v_add_u32 v19, s39, v2
          v_mov_b32 v18, 1
          s_cmp_eq_u32 s7, 2
          s_cbranch_scc1 L_a_helper
          s_cmp_eq_u32 s7, 1
          s_cbranch_scc1 L_a_cons''')

    addr_wstream(a, 7, 's6', 10, 11, 12, 60)
    a('s_add_u32 s61, s6, 4')
    addr_wstream(a, 8, 's61', 10, 11, 12, 60)
    addr_wstream(a, 9, '8', 10, 11, 12, 60)
    a(f'''s_lshl_b32 s62, s6, 10
          s_add_u32 s62, s62, {L_W}
          s_cmp_eq_u32 s6, 3
          s_cselect_b32 s63, 0, s6
          s_and_b32 s64, s6, 1
          s_waitcnt lgkmcnt(0)
          s_barrier''')
    a.srd(SB, 10, 663552)
    a.srd(WS, 36, WS_SIZE)

    def wpiece(vaddr, e, lds_add):
        a(f'''s_add_u32 s60, s62, {e*9216 + lds_add}
              s_mov_b32 m0, s60
              s_mov_b32 s61, {e*73728}
              buffer_load_dwordx4 v{vaddr}, s[{SB}:{SB+3}], s61 offen lds''')

    def wpiece8(s_e, e0):
        a(f'''s_add_u32 s61, s{s_e}, {e0}
              s_mul_i32 s60, s61, 9216
              s_add_u32 s60, s60, {L_W + 8192}
              s_mov_b32 m0, s60
              s_mul_i32 s61, s61, 73728
              buffer_load_dwordx4 v9, s[{SB}:{SB+3}], s61 offen lds''')

    PACE = int(os.environ.get('PACE', '4'))
    seq = []
    for c in range(3):
        for e in range(3 * c, 3 * c + 3):
            seq.append(('w', 7, e, 0)); seq.append(('w', 8, e, 4096))
        seq.append(('8', 3 * c))
    for n, op in enumerate(seq):
        if n == 18:
            lds_wait(a, 2, 64, 32, 66)
        if op[0] == 'w':
            wpiece(op[1], op[2], op[3])
        else:
            wpiece8(63, op[1])
        if n >= PACE:
            a(f's_waitcnt vmcnt({PACE})')
        if n - PACE in (6, 13):
            a(f'ds_write_b32 v19, v18 offset:{16*((n-PACE)//7)}')
    for last in (6, 13, 20):
        if last + PACE > 20:
            a(f'''s_waitcnt vmcnt({20-last})
                  ds_write_b32 v19, v18 offset:{16*(last//7)}''')
    a.stamp(1)
    a(f'''s_cmp_eq_u32 s6, 0
          s_cbranch_scc0 L_a_kvok''')
    lds_wait(a, 2, 32, 32, 66)
    lds_wait(a, 2, 80, 32, 66, n=1)
    a(f'''
          v_lshrrev_b32 v18, 1, v0
          v_lshlrev_b32 v18, 7, v18
          v_and_b32 v20, 1, v0
          v_lshl_add_u32 v18, v20, 4, v18
          s_mov_b32 s60, {WS_FL}
          s_mov_b32 s66, {SPIN}
          L_a_kvpoll:
          buffer_load_dwordx4 v[20:23], v18, s[{WS}:{WS+3}], s60 offen sc1
          s_waitcnt vmcnt(0)
          v_and_b32 v20, v20, v21
          v_and_b32 v22, v22, v23
          v_and_b32 v20, v20, v22
          v_cmp_ne_u32 vcc, 1, v20
          s_cbranch_vccz L_a_kvok
          s_sleep 2
          s_sub_u32 s66, s66, 1
          s_cmp_lg_u32 s66, 0
          s_cbranch_scc1 L_a_kvpoll
          L_a_kvok:''')
    a('s_branch L_a_b3a')

    a('L_a_cons:')
    a('s_mov_b32 s60, 0')
    addr_trW(a, 14, L_W, 60, 10, 11)
    a(f'v_add_u32 v15, {9*4608}, v14')
    addr_xfrag(a, 16, 10, 12, 11, 60)
    a('''v_lshlrev_b32 v12, 2, v12
         s_waitcnt lgkmcnt(0)''')
    a.srd(WS, 36, WS_SIZE)
    a.srd(SD, 34, 256)
    a(f'''s_add_u32 s64, s2, s6
          s_cmp_eq_u32 s64, 0
          s_cbranch_scc0 L_a_noclr
          v_lshlrev_b32 v20, 7, v0
          s_mov_b32 s64, {WS_FL}
          v_mov_b32 v24, 0
          v_mov_b32 v25, 0
          v_mov_b32 v26, 0
          v_mov_b32 v27, 0
          buffer_store_dwordx4 v[24:27], v20, s[{WS}:{WS+3}], s64 offen sc1
          buffer_store_dwordx4 v[24:27], v20, s[{WS}:{WS+3}], s64 offen offset:16 sc1
          s_add_u32 s64, s64, 8192
          buffer_store_dwordx4 v[24:27], v20, s[{WS}:{WS+3}], s64 offen sc1
          buffer_store_dwordx4 v[24:27], v20, s[{WS}:{WS+3}], s64 offen offset:16 sc1
          v_cmp_eq_u32 vcc, 0, v0
          s_nop 1
          v_cndmask_b32 v20, v3, v24, vcc
          s_barrier
          s_waitcnt vmcnt(0)
          buffer_store_dword v18, v20, s[{SD}:{SD+3}], 0 offen sc1
          s_branch L_a_clrd
          L_a_noclr:
          s_barrier
          L_a_clrd:''')
    QAD = 84
    a('s_add_u32 s60, s60, 15360')
    for x in range(5):
        for pr in range(2):
            addr_qx(a, QAD + 2 * x + pr, 16 * x + 2 * pr, 12, 10, 60, 9, 11, 13)
    lds_wait(a, 19, 48, 4, 66, n=1)
    a.stamp(1)

    def gateA(ks):
        if ks % 6 == 0:
            lds_wait(a, 2, 16 * (ks // 6), 4, 66)
            return True
        return False
    gemm5(a, 32, 8, 64, lambda ks, x: ((14, ks * 4608 + 32 * x) if ks < 9 else (15, (ks - 9) * 4608 + 32 * x)),
          lambda ks: 20 + 4 * (ks % 3), lambda ks: (16, ks * 1024), gateA)
    lds_wait(a, 19, 64, 4, 66, n=1)
    a(f's_mov_b32 s60, {f32bits(QSCALE)}')
    for x in range(5):
        acc = 64 + 4 * x
        for r in range(4):
            a(f'v_mul_f32 v{acc+r}, s60, v{acc+r}')
        a(f'v_cvt_pk_bf16_f32 v{acc}, v{acc}, v{acc+1}')
        a(f'v_cvt_pk_bf16_f32 v{acc+1}, v{acc+2}, v{acc+3}')
        a(f'ds_write_b32 v{QAD+2*x}, v{acc}')
        a(f'ds_write_b32 v{QAD+2*x+1}, v{acc+1}')
    a('L_a_b3a:')
    a.stamp(2)
    a('s_waitcnt lgkmcnt(0)\ns_barrier')
    a.stamp(3)
    a('s_lshl_b32 s60, s3, 10')
    for add in (0, HALF_P):
        a(f'''s_add_u32 s61, s60, {add*1024}
              s_mov_b32 m0, s61
              s_nop 0
              buffer_load_dwordx4 v1, s[{WS}:{WS+3}], s61 offen lds''')
    a('''s_cmp_lt_u32 s3, 6
         s_cbranch_scc0 L_a_c0d''')
    for add in (8, HALF_P + 8):
        a(f'''s_add_u32 s61, s60, {add*1024}
              s_mov_b32 m0, s61
              s_nop 0
              buffer_load_dwordx4 v1, s[{WS}:{WS+3}], s61 offen lds''')
    a('L_a_c0d:')

    QA1, QA2, QB1, QB2 = 4, 8, 12, 10
    K1 = [16, 20]
    K2 = [24, 26]
    VA, VB = 28, 32
    IDX, aK1, aK2, aV = 36, 37, 38, 39
    NMA, NMB = 40, 41
    T0 = 42
    S = [48, 64, 80, 96]
    OA, OB = 112, 128
    a(f'''s_mul_i32 s60, s6, 576
          s_add_u32 s60, s60, 15360
          v_bfe_u32 v{T0}, v0, 4, 1
          v_mul_u32_u24 v{T0}, 18432, v{T0}
          v_add_u32 v{T0}, s60, v{T0}
          v_and_b32 v{T0+2}, 15, v0
          v_lshl_add_u32 v{T0+1}, v{T0+2}, 2, v{T0}
          v_lshl_add_u32 v{T0}, v{T0+2}, 4, v{T0}
          v_lshrrev_b32 v{T0+3}, 5, v0
          v_lshl_add_u32 v{T0}, v{T0+3}, 8, v{T0}
          ds_read_b128 {vr(QA1,4)}, v{T0}
          ds_read_b128 {vr(QB1,4)}, v{T0} offset:36864
          ds_read_b32 v{QA2}, v{T0+1} offset:512
          ds_read_b32 v{QB2}, v{T0+1} offset:{36864+512}
          v_and_b32 v{T0+2}, 31, v0
          v_lshlrev_b32 v{aK2}, 2, v{T0+2}
          v_mov_b32 v{IDX}, 0xdddd
          v_mov_b32 v{K2[0]+1}, 0x3f80
          v_mov_b32 v{K2[1]+1}, 0x3f80
          v_mov_b32 v{QA2+1}, 0
          v_mov_b32 v{QB2+1}, 0
          s_mul_i32 s61, s7, {32*TILE_B}
          v_add_u32 v{aK1}, s61, v1
          v_add_u32 v{aK2}, s61, v{aK2}
          v_mul_u32_u24 v{T0+1}, 288, v{T0+3}
          v_lshl_add_u32 v{T0+1}, v{T0+2}, 4, v{T0+1}
          v_and_b32 v{T0+3}, 27, v{T0+2}
          v_cmp_eq_u32 vcc, 24, v{T0+3}
          v_mov_b32 v{T0+3}, 576
          v_mov_b32 v{T0+4}, 592
          v_cndmask_b32 v{T0+3}, v{T0+4}, v{T0+3}, vcc
          v_cmp_gt_u32 vcc, 18, v{T0+2}
          s_lshl_b32 s64, s5, 2
          s_nop 0
          v_cndmask_b32 v{aV}, v{T0+3}, v{T0+1}, vcc
          v_add_u32 v{aV}, s61, v{aV}
          s_add_u32 s64, s64, s6
          v_cmp_gt_u32 vcc, 32, v0
          s_mov_b32 s65, 0
          s_mov_b32 s72, 0x150
          v_mov_b32 v144, v2
          v_add_u32 v2, {128-16}, v2
          s_waitcnt lgkmcnt(0)
          v_cndmask_b32 v{QA2}, 0, v{QA2}, vcc
          v_cndmask_b32 v{QB2}, 0, v{QB2}, vcc
          s_waitcnt vmcnt(0)
          s_barrier''')
    M2 = os.environ.get('MAINST')
    a.stamp(1 if M2 else 4)
    if os.environ.get('OPRIO'):
        a(f'''s_cmp_eq_u32 s7, 0
             s_cbranch_scc0 L_a_np
             s_setprio {os.environ['OPRIO']}
             L_a_np:''')

    def qk1(dst, kb, q1):
        a(f'v_mfma_f32_32x32x16_bf16 {vr(dst,16)}, {vr(K1[kb],4)}, {vr(q1,4)}, 0')

    def qk2(dst, kb, q2):
        a(f'v_mfma_f32_32x32x8_bf16 {vr(dst,16)}, {vr(K2[kb],2)}, {vr(q2,2)}, {vr(dst,16)}')

    def pv(o, v, p):
        a(f'v_smfmac_f32_32x32x32_bf16 {vr(o,16)}, {vr(v,4)}, {vr(p,8)}, v{IDX}')

    def rdK(kb, tile):
        a(f'ds_read_b128 {vr(K1[kb],4)}, v{aK1} offset:{tile*TILE_B}')
        a(f'ds_read_b32 v{K2[kb]}, v{aK2} offset:{tile*TILE_B+1024}')

    def rdV(reg, tile, half):
        a(f'ds_read_b128 {vr(reg,4)}, v{aV} offset:{tile*TILE_B+1152+VG*half}')

    def maxtree(dst, s, init=None):
        if init is None:
            a(f'v_max3_f32 v{dst}, v{s}, v{s+1}, v{s+2}')
            rest = list(range(3, 16))
        else:
            rest = list(range(0, 16))
        while len(rest) >= 2:
            a(f'v_max3_f32 v{dst}, v{dst}, v{s+rest[0]}, v{s+rest[1]}')
            rest = rest[2:]
        if rest:
            a(f'v_max_f32 v{dst}, v{dst}, v{s+rest[0]}')

    def set_bias():
        for nm, q2, t in ((NMA, QA2, T0), (NMB, QB2, T0 + 1)):
            a(f'v_mov_b32 v{t}, v{nm}')
        a('s_nop 1')
        for nm, q2, t in ((NMA, QA2, T0), (NMB, QB2, T0 + 1)):
            a(f'v_permlane32_swap_b32 v{nm}, v{t}')
        a('v_cmp_gt_u32 vcc, 32, v0')
        for nm, q2, t in ((NMA, QA2, T0), (NMB, QB2, T0 + 1)):
            a(f'''v_max_f32 v{nm}, v{nm}, v{t}
                  v_cvt_pk_bf16_f32 v{t}, -v{nm}, 0
                  v_lshlrev_b32 v{nm}, 16, v{t}
                  v_cndmask_b32 v{q2+1}, 0, v{t}, vcc''')

    def zero_state():
        for i in range(16):
            a(f'v_mov_b32 v{OA+i}, 0')
            a(f'v_mov_b32 v{OB+i}, 0')
        for i in range(8, 16):
            a(f'v_mov_b32 v{S[3]+i}, 0')
        for i in range(4):
            a(f'v_mov_b32 v{VB+i}, 0')

    rdK(0, 0)
    a('s_waitcnt lgkmcnt(0)')
    qk1(S[0], 0, QA1); qk2(S[0], 0, QA2)
    qk1(S[1], 0, QB1); qk2(S[1], 0, QB2)
    zero_state()
    maxtree(NMA, S[0])
    maxtree(NMB, S[1])
    set_bias()
    a('L_a_restart:')
    rdK(0, 0)
    rdK(1, 1)
    rdV(VA, 0, 0)
    a('s_waitcnt lgkmcnt(3)')
    qk1(S[0], 0, QA1); qk2(S[0], 0, QA2)
    a(f's_mov_b32 s66, {16//int(os.environ.get("UNR", "2"))}')
    a('s_nop 10')
    a('.p2align 6')
    a('L_a_loop:')

    def exps(buf, lo):
        for i in range(lo, lo + 4):
            a(f'v_exp_f32 v{S[buf]+i}, v{S[buf]+i}')

    UNR = int(os.environ.get('UNR', '2'))
    for tg in range(2 * UNR):
        tl = tg & 1
        kb = tl & 1
        cur, nxt, prv = 2 * tl, 2 * tl + 1, (2 * tl + 3) % 4
        qk1(S[nxt], kb, QB1)
        exps(cur, 0)
        qk2(S[nxt], kb, QB2)
        exps(cur, 4)
        pv(OB, VB, S[prv] + 8)
        rdV(VB, tg, 1)
        exps(cur, 8)
        a('s_waitcnt lgkmcnt(1)')
        pv(OA, VA, S[cur])
        exps(cur, 12)
        cur, nxt, prv = 2 * tl + 1, (2 * tl + 2) % 4, 2 * tl
        qk1(S[nxt], kb ^ 1, QA1)
        exps(cur, 0)
        qk2(S[nxt], kb ^ 1, QA2)
        rdK(kb, tg + 2)
        exps(cur, 4)
        a('s_waitcnt lgkmcnt(2)')
        pv(OA, VB, S[prv] + 8)
        exps(cur, 8)
        pv(OB, VA, S[cur])
        rdV(VA, tg + 1, 0)
        exps(cur, 12)
    a(f'''v_add_u32 v{aK1}, {2*UNR*TILE_B}, v{aK1}
          v_add_u32 v{aK2}, {2*UNR*TILE_B}, v{aK2}
          v_add_u32 v{aV}, {2*UNR*TILE_B}, v{aV}
          s_add_u32 s67, s66, s65
          s_bitcmp1_b32 s72, s67
          s_cbranch_scc0 L_a_nobar
          v_add_u32 v2, 16, v2''')
    lds_wait(a, 2, 0, T0 + 2, 67)
    a(f'''
          L_a_nobar:
          s_sub_u32 s66, s66, 1
          s_cmp_lg_u32 s66, 0
          s_cbranch_scc1 L_a_loop''')
    pv(OB, VB, S[3] + 8)
    a(f'''v_subrev_u32 v{aK1}, {32*TILE_B}, v{aK1}
          v_subrev_u32 v{aK2}, {32*TILE_B}, v{aK2}
          v_subrev_u32 v{aV}, {32*TILE_B}, v{aV}
          s_waitcnt lgkmcnt(0)
          s_nop 9''')
    a(f'''s_cmp_eq_u32 s65, 0
          s_cbranch_scc0 L_a_ok
          v_add_f32 v{T0}, |v{OA}|, |v{OB}|''')
    for i in range(1, 10):
        a(f'v_add_f32 v{T0}, v{T0}, |v{OA+i}|')
        a(f'v_add_f32 v{T0}, v{T0}, |v{OB+i}|')
    a(f'''v_mov_b32 v{T0+2}, 0x7e800000
          v_cmp_nlt_f32 vcc, v{T0}, v{T0+2}
          v_mov_b32 v{T0+2}, 0x4f800000
          v_cmp_nlt_f32 s[68:69], v{OA+12}, v{T0+2}
          v_cmp_nlt_f32 s[70:71], v{OB+12}, v{T0+2}
          s_or_b64 vcc, vcc, s[68:69]
          s_or_b64 vcc, vcc, s[70:71]
          s_cbranch_vccz L_a_ok
          s_mov_b32 s65, 16
          v_mov_b32 v{QA2+1}, 0
          v_mov_b32 v{QB2+1}, 0
          v_mov_b32 v{NMA}, 0xff800000
          v_mov_b32 v{NMB}, 0xff800000
          s_mov_b32 s66, 32
          L_a_mloop:''')
    rdK(0, 0)
    a(f'''v_add_u32 v{aK1}, {TILE_B}, v{aK1}
          v_add_u32 v{aK2}, {TILE_B}, v{aK2}
          s_waitcnt lgkmcnt(0)''')
    qk1(S[0], 0, QA1); qk2(S[0], 0, QA2)
    qk1(S[1], 0, QB1); qk2(S[1], 0, QB2)
    a('s_nop 11')
    maxtree(NMA, S[0], init=True)
    maxtree(NMB, S[1], init=True)
    a(f'''s_sub_u32 s66, s66, 1
          s_cmp_lg_u32 s66, 0
          s_cbranch_scc1 L_a_mloop
          v_subrev_u32 v{aK1}, {32*TILE_B}, v{aK1}
          v_subrev_u32 v{aK2}, {32*TILE_B}, v{aK2}''')
    set_bias()
    zero_state()
    a('s_branch L_a_restart')
    a('L_a_ok:')
    if M2: a.stamp(3)
    FLB = 144
    L_P = 46080
    L_W2 = 32 * TILE_B
    L_S = L_W2 + 36864
    SW, SX, SO = SA, SB, SC
    a(f'''v_add_u32 v145, s39, v{FLB}
          v_mov_b32 v146, 1
          s_mul_i32 s60, s6, 6144
          s_add_u32 s60, s60, {L_P}
          v_add_u32 v{T0}, s60, v1
          s_cmp_eq_u32 s7, 0
          s_cbranch_scc0 L_a_young''')
    a(f'''ds_write_b32 v145, v146 offset:256
          v_mov_b32 v{OA+10}, v{OA+12}
          v_mov_b32 v{OA+11}, v{NMA}
          v_mov_b32 v{OB+10}, v{OB+12}
          v_mov_b32 v{OB+11}, v{NMB}''')

    def wo_addr(dst, dstx, s_stream):
        a(f'''s_lshl_b32 s60, {s_stream}, 6
              v_add_u32 v16, s60, v0
              v_mul_u32_u24 v17, 7282, v16
              v_lshrrev_b32 v17, 16, v17
              v_mul_u32_u24 v18, 9, v17
              v_sub_u32 v16, v16, v18
              v_lshlrev_b32 v16, 4, v16
              v_lshrrev_b32 v18, 4, v17
              v_mul_u32_u24 v18, 18, v18
              v_bfe_u32 v19, v17, 3, 1
              v_lshl_add_u32 v18, v19, 2, v18
              v_and_b32 v19, 1, v17
              v_lshl_add_u32 v18, v19, 3, v18
              v_bfe_u32 v20, v17, 1, 2
              v_add_u32 v18, v18, v20
              v_mul_u32_u24 v18, 1152, v18
              v_add3_u32 v{dst}, v18, v16, s19
              v_lshrrev_b32 v18, 3, v17
              v_lshlrev_b32 v18, 2, v18
              v_lshl_add_u32 v18, v19, 1, v18
              v_lshrrev_b32 v19, 1, v20
              v_add_u32 v18, v18, v19
              v_mul_u32_u24 v18, 18, v18
              v_and_b32 v20, 1, v20
              v_add3_u32 v18, v18, v20, 16
              v_mul_u32_u24 v18, 1152, v18
              v_add3_u32 v{dstx}, v18, v16, s19''')
    wo_addr(4, 7, 's6')
    a('s_add_u32 s61, s6, 4')
    wo_addr(5, 8, 's61')
    wo_addr(6, 9, '8')
    a.srd(SW, 16, 663552)
    a.srd(SX, 8, 2359296)
    a.srd(SO, 32, 2359296)
    lds_wait(a, FLB, 256, 16, 66, sleep=4)
    for tq, O in ((0, OA), (1, OB)):
        for q in range(3):
            a(f'ds_write_b128 v{T0}, {vr(O+4*q,4)} offset:{3072*tq+1024*q}')
    a(f'''s_lshl_b32 s62, s6, 10
          s_waitcnt lgkmcnt(0)
          ds_write_b32 v145, v146 offset:272''')

    def wo_round(e, s8_owner):
        base = e * 9216 if e < 5 else L_W2 + (e - 5) * 9216
        x = 3 if e == 8 else 0
        src = 0 if e == 8 else e * 72 * 1152
        for v, add in ((4 + x, 0), (5 + x, 4096)):
            a(f'''s_add_u32 s60, s62, {base+add}
                  s_mov_b32 m0, s60
                  s_mov_b32 s61, {src}
                  buffer_load_dwordx4 v{v}, s[{SW}:{SW+3}], s61 offen lds''')
        _uid[0] += 1
        a(f'''s_cmp_eq_u32 s6, {s8_owner}
              s_cbranch_scc0 L_wo{_uid[0]}
              s_mov_b32 m0, {base+8192}
              s_nop 0
              buffer_load_dwordx4 v{6+x}, s[{SW}:{SW+3}], s61 offen lds
              L_wo{_uid[0]}:
              s_waitcnt vmcnt(4)''')
    for e in range(5):
        wo_round(e, e & 3)
    XA, GV = 84, 87
    a(f'''s_mul_i32 s65, s6, 6144
          s_add_u32 s65, s65, {L_S}
          s_mul_i32 s68, s5, {72*4096}
          s_lshl_b32 s61, s4, 7
          s_add_u32 s68, s68, s61
          s_lshl_b32 s61, s6, 5
          s_add_u32 s68, s68, s61
          s_add_u32 s68, s68, {WS_Y}
          s_mul_i32 s60, s6, 18432
          s_add_u32 s18, s18, s60''')
    for m in range(3):
        a(f'''v_add_u32 v16, {64*m}, v0
              v_mul_u32_u24 v17, 7282, v16
              v_lshrrev_b32 v17, 16, v17
              v_mul_u32_u24 v18, 9, v17
              v_sub_u32 v18, v16, v18
              v_lshlrev_b32 v18, 4, v18
              v_mul_u32_u24 v17, 1152, v17
              v_add3_u32 v{XA+m}, v17, v18, s19
              v_lshrrev_b32 v17, 1, v16
              v_and_b32 v18, 1, v16
              v_lshlrev_b32 v18, 4, v18
              v_cmp_gt_u32 vcc, 144, v16
              v_lshl_add_u32 v{92+m}, v17, 12, v18
              s_nop 0
              v_cndmask_b32 v{XA+m}, v3, v{XA+m}, vcc
              v_cndmask_b32 v{92+m}, v3, v{92+m}, vcc''')
    a(f'''s_lshl_b32 s60, s4, 8
          s_lshl_b32 s61, s6, 6
          s_add_u32 s60, s60, s61
          s_add_u32 s60, s60, {WS_G}
          v_and_b32 v16, 15, v0
          v_lshlrev_b32 v17, 2, v16
          buffer_load_dword v{GV}, v17, s[{WS}:{WS+3}], s60 offen
          s_mov_b32 s60, 0''')
    addr_trW(a, 14, 0, 60, 10, 11)
    a(f'''v_add_u32 v15, {L_W2}, v14
          v_mul_u32_u24 v88, 144, v16
          v_lshrrev_b32 v11, 4, v0
          v_lshl_add_u32 v88, v11, 3, v88
          v_add_u32 v88, s65, v88
          v_lshlrev_b32 v89, 3, v0
          v_add_u32 v89, s65, v89
          v_add_u32 v90, s65, v1
          v_mov_b32 v2, v{FLB}
          v_mov_b32 v12, v145
          v_mov_b32 v13, 1''')
    lds_wait(a, 2, 288, 16, 66, sleep=8)
    if M2: a.stamp(2)
    for e in range(5, 9):
        wo_round(e, e & 3)
    for m in range(3):
        a(f'''s_add_u32 s61, s65, {1024*m}
              s_mov_b32 m0, s61
              s_nop 0
              buffer_load_dwordx4 v{XA+m}, s[{SX}:{SX+3}], s18 offen lds''')
    a('''s_waitcnt vmcnt(0)
         ds_write_b32 v12, v13 offset:320
         s_cmp_eq_u32 s6, 0
         s_cbranch_scc0 L_a_tw''')
    lds_wait(a, 2, 304, 16, 66)
    a(f'''s_lshl_b32 s60, s4, 7
          s_lshl_b32 s61, s5, 2
          s_add_u32 s61, s61, s60
          s_add_u32 s61, s61, {WS_FL + 8192}
          v_cmp_eq_u32 vcc, 0, v0
          v_mov_b32 v16, 0
          v_bfe_u32 v17, v0, 1, 2
          v_cndmask_b32 v16, v3, v16, vcc
          buffer_store_dword v13, v16, s[{WS}:{WS+3}], s61 offen sc1
          v_lshlrev_b32 v17, 7, v17
          s_lshl_b32 s61, s5, 9
          s_add_u32 s61, s61, 4096
          v_add_u32 v17, s61, v17
          v_mov_b32 v18, s60
          v_cmp_gt_u32 vcc, 8, v0
          v_and_b32 v19, 1, v0
          s_mov_b32 s60, {WS_FL + 8192}
          v_cndmask_b32 v17, v18, v17, vcc
          v_lshl_add_u32 v17, v19, 4, v17
          s_mov_b32 s66, {SPIN}
          L_a_opoll:
          buffer_load_dwordx4 v[20:23], v17, s[{WS}:{WS+3}], s60 offen sc1
          s_waitcnt vmcnt(0)
          v_and_b32 v20, v20, v21
          v_and_b32 v22, v22, v23
          v_and_b32 v20, v20, v22
          v_cmp_ne_u32 vcc, 1, v20
          s_cbranch_vccz L_a_ook
          s_sleep 2
          s_sub_u32 s66, s66, 1
          s_cmp_lg_u32 s66, 0
          s_cbranch_scc1 L_a_opoll
          L_a_ook:
          ds_write_b32 v2, v13 offset:336
          L_a_tw:''')
    lds_wait(a, 2, 336, 16, 66, n=1)
    if M2: a.stamp(4)
    OF = 96
    a(f'''s_add_u32 s60, s18, {WS_O}
          s_add_u32 s61, s60, 4096
          s_add_u32 s62, s60, 8192
          s_add_u32 s63, s60, 12288
          s_add_u32 s64, s60, 16384''')
    for ks in range(18):
        a(f'buffer_load_dwordx4 {vr(OF+4*ks,4)}, v1, s[{WS}:{WS+3}], s{60+ks//4} offen offset:{1024*(ks%4)}')
    for m in range(3):
        a(f'''s_add_u32 s61, s65, {3072+1024*m}
              s_mov_b32 m0, s61
              s_nop 0
              buffer_load_dwordx4 v{92+m}, s[{WS}:{WS+3}], s68 offen lds''')
    lds_wait(a, 2, 320, 16, 66)

    def gateT(ks):
        return False

    def preT(ks):
        a(f's_waitcnt vmcnt({20-ks})')
    gemm5(a, 32, 8, 64, lambda ks, x: ((14, ks * 4608 + 32 * x) if ks < 10 else (15, (ks - 10) * 4608 + 32 * x)),
          lambda ks: OF + 4 * ks, lambda ks: None, gateT, look=6, pre=preT)
    a('s_waitcnt vmcnt(0)')
    for x in range(5):
        a(f'ds_read_b64 {vr(20+2*x,2)}, v88 offset:{32*x}')
        a(f'ds_read_b64_tr_b16 {vr(32+2*x,2)}, v89 offset:{3072+512*x}')
    a(f'v_sub_f32 v91, 1.0, v{GV}')
    for x in range(5):
        acc = 64 + 4 * x
        a(f's_waitcnt lgkmcnt({8-x})')
        for r in range(4):
            xs, ys = 20 + 2 * x + (r >> 1), 32 + 2 * x + (r >> 1)
            t = 8 + 2 * (r & 1)
            if r & 1:
                a(f'v_and_b32 v{t}, 0xffff0000, v{xs}')
                a(f'v_and_b32 v{t+1}, 0xffff0000, v{ys}')
            else:
                a(f'v_lshlrev_b32 v{t}, 16, v{xs}')
                a(f'v_lshlrev_b32 v{t+1}, 16, v{ys}')
            a(f'''v_mul_f32 v{t}, v{t}, v{t+1}
                  v_mul_f32 v{t}, v{t}, v91
                  v_fma_f32 v{acc+r}, v{GV}, v{acc+r}, v{t}''')
        a(f'''v_cvt_pk_bf16_f32 v{acc}, v{acc}, v{acc+1}
              v_cvt_pk_bf16_f32 v{acc+1}, v{acc+2}, v{acc+3}''')
        if x == 4:
            a(f'''v_cmp_gt_u32 vcc, 32, v0
                  s_and_saveexec_b64 s[62:63], vcc
                  ds_write_b64 v88, {vr(acc,2)} offset:{32*x}
                  s_mov_b64 exec, s[62:63]''')
        else:
            a(f'ds_write_b64 v88, {vr(acc,2)} offset:{32*x}')
    for m in range(3):
        a(f'ds_read_b128 {vr(20+4*m,4)}, v90 offset:{1024*m}')
    for m in range(3):
        a(f'''s_waitcnt lgkmcnt({2-m})
              buffer_store_dwordx4 {vr(20+4*m,4)}, v{XA+m}, s[{SO}:{SO+3}], s18 offen''')
    a.stamp_out(0, WS)
    a('s_endpgm')

    a('L_a_young:')
    a(f'''ds_write_b32 v145, v146 offset:288
          s_add_u32 s60, s18, {WS_O}
          s_lshr_b32 s61, s64, 1
          s_lshl_b32 s61, s61, 10
          s_and_b32 s62, s64, 1
          s_lshl_b32 s62, s62, 9
          s_add_u32 s61, s61, s62
          s_add_u32 s61, s61, s60
          v_bfe_u32 v{T0+2}, v0, 4, 1
          v_mul_u32_u24 v{T0+2}, 18432, v{T0+2}
          v_and_b32 v{T0+3}, 15, v0
          v_lshl_add_u32 v{T0+2}, v{T0+3}, 4, v{T0+2}
          v_lshrrev_b32 v{T0+3}, 5, v0
          v_lshl_add_u32 v{T0+3}, v{T0+3}, 8, v{T0+2}
          v_cmp_gt_u32 vcc, 32, v0
          s_lshr_b32 s62, s64, 4
          s_add_u32 s62, s62, 16
          s_lshl_b32 s62, s62, 10
          v_cndmask_b32 v{T0+2}, v3, v{T0+2}, vcc
          s_bfe_u32 s63, s64, 0x20002
          s_lshl_b32 s63, s63, 8
          s_add_u32 s62, s62, s63
          s_and_b32 s63, s64, 3
          s_lshl_b32 s63, s63, 2
          s_add_u32 s62, s62, s63
          s_add_u32 s62, s62, s60''')
    lds_wait(a, 145, 272, 16, 66, n=1)
    PP = [S[0], S[1]]
    for tq in range(2):
        a(f'ds_read_b128 {vr(PP[tq]+8,4)}, v{T0} offset:{3072*tq+2048}')
        a(f'ds_read_b128 {vr(PP[tq],4)}, v{T0} offset:{3072*tq}')
        a(f'ds_read_b128 {vr(PP[tq]+4,4)}, v{T0} offset:{3072*tq+1024}')
    for tq, O, NM in ((0, OA, NMA), (1, OB, NMB)):
        P_ = PP[tq]
        a(f'''s_waitcnt lgkmcnt({5-3*tq})
              v_min_f32 v16, v{NM}, v{P_+11}
              v_sub_f32 v17, v16, v{NM}
              v_sub_f32 v16, v16, v{P_+11}
              v_exp_f32 v17, v17
              v_exp_f32 v16, v16
              s_nop 0
              v_mul_f32 v18, v17, v{O+12}
              v_fmac_f32 v18, v16, v{P_+10}
              v_rcp_f32 v18, v18
              s_nop 0
              v_mul_f32 v17, v17, v18
              v_mul_f32 v16, v16, v18
              s_waitcnt lgkmcnt({3-3*tq})''')
        for i in range(10):
            a(f'v_mul_f32 v{O+i}, v{O+i}, v17')
            a(f'v_fmac_f32 v{O+i}, v{P_+i}, v16')
        D_ = S[2] + 8 * tq
        for i in range(5):
            a(f'v_cvt_pk_bf16_f32 v{D_+i}, v{O+2*i}, v{O+2*i+1}')
        a(f'''buffer_store_dwordx4 {vr(D_,4)}, v{T0+3}, s[{WS}:{WS+3}], s61 offen sc1
              buffer_store_dword v{D_+4}, v{T0+2}, s[{WS}:{WS+3}], s62 offen sc1
              s_add_u32 s61, s61, 36864
              s_add_u32 s62, s62, 36864''')
    if M2: a.stamp(4)
    a('''s_waitcnt vmcnt(0)
         ds_write_b32 v145, v146 offset:304''')
    a.stamp_out(0, WS)
    a('s_endpgm')

    a('L_a_helper:')
    a(f'''s_setprio 3
          s_cmp_ge_u32 s5, 3
          s_cselect_b32 s61, 3, 0
          s_sub_u32 s60, s5, s61
          s_lshl_b32 s61, s60, 4
          s_cmp_eq_u32 s60, 2
          s_cselect_b32 s61, 20, s61
          v_mul_u32_u24 v9, 36, v0
          v_add_u32 v9, s61, v9
          v_lshrrev_b32 v6, 2, v0
          v_lshrrev_b32 v8, 4, v0
          v_sub_u32 v8, 0, v8
          v_xor_b32 v8, v8, v0
          v_and_b32 v8, 3, v8
          v_lshlrev_b32 v8, 4, v8
          v_mul_u32_u24 v6, 1152, v6
          v_add_u32 v6, v6, v8
          s_mul_i32 s61, s6, 18432
          s_add_u32 s60, s61, s18
          s_mov_b32 s62, 0
          s_mov_b32 s63, {L_WC}
          s_waitcnt lgkmcnt(0)''')
    FINE = os.environ.get('FINE')
    if FINE: a.stamp(1)
    a.srd(SB, 8, 2359296)
    a(f'''s_cmp_lt_u32 s5, 3
          s_cselect_b32 s{SC}, s12, s14
          s_cselect_b32 s{SC+1}, s13, s15
          s_and_b32 s{SC+1}, s{SC+1}, 0xffff
          s_mov_b32 s{SC+2}, 20736
          s_mov_b32 s{SC+3}, 0x00020000''')
    a.srd(SA, 30, 1152)
    a.dma_seq(18, 6, SB, 60, 64, 61, 1024)
    a('''s_cmp_lt_u32 s5, 6
         s_cbranch_scc0 L_a_nowc''')
    a.dma_seq(9, 9, SC, 62, 2304, 63, 1024)
    a('''s_barrier
         s_branch L_a_wcd
         L_a_nowc:
         v_lshlrev_b32 v11, 1, v0''')
    for m in range(9):
        a(f'buffer_load_ushort v{20+m}, v11, s[{SA}:{SA+3}], 0 offen offset:{128*m}')
    a(f'''v_add_u32 v10, {L_WC}, v1
          s_barrier
          s_waitcnt vmcnt(0)''')
    for m in range(9):
        a(f'ds_write_b16 v10, v{20+m} offset:{1024*m}')
    a('L_a_wcd:')
    if FINE: a.stamp(2)
    a.srd(WS, 36, WS_SIZE)
    a.srd(SD, 34, 256)
    RH = dict(B=[20, 24, 28, 32, 36], A=[40, 44, 48, 52, 56], acc=64, acc2=68)
    a(f'''v_lshrrev_b32 v15, 4, v0
          v_lshlrev_b32 v15, 3, v15
          v_bfe_u32 v16, v0, 2, 2
          v_add_u32 v15, v15, v16
          v_and_b32 v16, 1, v0
          v_lshlrev_b32 v16, 3, v16
          v_lshl_add_u32 v17, v15, 4, v16
          v_add_u32 v17, {L_WC}, v17''')
    addr_xfrag(a, 16, 4, 5, 15, 60)
    a(f'''s_and_b32 s60, s6, 1
          s_lshl_b32 s60, s60, 4
          v_add_u32 v6, s60, v4
          s_lshl_b32 s64, s4, 1
          s_lshr_b32 s60, s6, 1
          s_add_u32 s64, s64, s60
          s_mul_i32 s64, s64, {TILE_B}
          s_add_u32 s64, s64, {WS_KV}
          v_and_b32 v15, 1, v5
          v_mov_b32 v75, 0
          v_mov_b32 v76, v19
          v_mov_b32 v73, 1
          s_waitcnt vmcnt(0) lgkmcnt(0)
          ds_write_b32 v76, v73 offset:48
          buffer_load_dword v72, v75, s[{SD}:{SD+3}], 0 offen sc1''')
    a.stamp(3 if FINE else 1)
    a('s_waitcnt lgkmcnt(0)')
    gemm(a, list(range(18)), 1, RH, lambda ks: (16, ks * 1024), lambda ks, x: (17, ks * 512, 64), 5, swapped=True)
    E, E2 = 64, 68
    if FINE: a.stamp(4)
    a(f'''s_nop 6
          s_cmp_lt_u32 s5, 3
          s_cbranch_scc0 L_a_e3
          v_cvt_pk_bf16_f32 v20, v{E}, v{E+1}
          v_cvt_pk_bf16_f32 v21, v{E+2}, v{E+3}
          s_cmp_eq_u32 s5, 2
          s_cbranch_scc1 L_a_e2
          s_lshl_b32 s60, s5, 9
          v_lshlrev_b32 v18, 4, v6
          v_lshl_add_u32 v18, v15, 3, v18
          v_cmp_lt_u32 vcc, 31, v0
          s_add_u32 s64, s64, s60
          s_nop 0
          v_cndmask_b32 v18, v3, v18, vcc
          buffer_store_dwordx2 v[20:21], v18, s[{WS}:{WS+3}], s64 offen sc1
          s_branch L_a_edone
          L_a_e2:
          v_cmp_lt_u32 vcc, 47, v0
          v_lshlrev_b32 v18, 2, v6
          s_nop 0
          v_cndmask_b32 v18, v3, v18, vcc
          buffer_store_dword v21, v18, s[{WS}:{WS+3}], s64 offen offset:1024 sc1
          s_branch L_a_edone
          L_a_e3:
          s_cmp_lt_u32 s5, 6
          s_cbranch_scc0 L_a_e6''')
    a(f'''v_cvt_pk_bf16_f32 v20, v{E2}, v{E2+1}
          v_cvt_pk_bf16_f32 v21, v{E2+2}, v{E2+3}
          s_sub_u32 s60, s5, 3
          s_lshl_b32 s60, s60, 7
          s_cmp_eq_u32 s5, 5
          s_cselect_b32 s60, 160, s60
          s_cselect_b32 s61, 13, 7
          s_and_b32 s62, s6, 1
          s_mul_i32 s62, s62, {VG}
          s_add_u32 s64, s64, s62
          v_lshrrev_b32 v18, 5, v0
          v_mul_u32_u24 v18, 288, v18
          v_lshl_add_u32 v18, v4, 4, v18
          v_lshl_add_u32 v18, v15, 3, v18
          v_add_u32 v18, s60, v18
          v_cmp_lt_u32 vcc, s61, v4
          v_lshlrev_b32 v22, 3, v5
          v_add_u32 v22, {576+128}, v22
          v_cndmask_b32 v18, v3, v18, vcc
          s_cmp_eq_u32 s5, 5
          s_cbranch_scc0 L_a_e4
          v_cmp_gt_u32 vcc, 32, v0
          v_mov_b32 v23, 0x3f803f80
          s_nop 0
          v_cndmask_b32 v23, 0, v23, vcc
          v_cmp_eq_u32 vcc, 0, v4
          s_nop 1
          v_cndmask_b32 v18, v18, v22, vcc
          v_cndmask_b32 v20, v20, v23, vcc
          v_cndmask_b32 v21, v21, v23, vcc
          L_a_e4:
          buffer_store_dwordx2 v[20:21], v18, s[{WS}:{WS+3}], s64 offen offset:{1152-128} sc1
          s_branch L_a_edone
          L_a_e6:
          v_mul_f32 v20, {f32bits(-math.log2(math.e))}, v{E}
          v_exp_f32 v20, v20
          s_lshl_b32 s60, s4, 8
          s_lshl_b32 s61, s6, 6
          v_add_f32 v20, 1.0, v20
          v_rcp_f32 v20, v20
          s_add_u32 s60, s60, s61
          s_add_u32 s60, s60, {WS_G}
          s_sub_u32 s61, s5, 4
          s_lshl_b32 s61, s61, 1
          s_sub_u32 s61, s61, 2
          v_cmp_eq_u32 vcc, s61, v5
          v_lshlrev_b32 v18, 2, v4
          s_nop 0
          v_cndmask_b32 v18, v3, v18, vcc
          buffer_store_dword v20, v18, s[{WS}:{WS+3}], s60 offen sc1
          L_a_edone:
          ds_write_b32 v76, v73 offset:64
          s_mov_b32 s66, {SPIN}
          L_a_clrw:
          s_waitcnt vmcnt(0)
          v_cmp_ne_u32 vcc, 1, v72
          s_cbranch_vccz L_a_clrok
          s_sub_u32 s66, s66, 1
          s_cmp_eq_u32 s66, 0
          s_cbranch_scc1 L_a_clrok
          s_sleep 2
          buffer_load_dword v72, v75, s[{SD}:{SD+3}], 0 offen sc1
          s_branch L_a_clrw
          L_a_clrok:
          ds_write_b32 v76, v73 offset:80
          s_lshl_b32 s60, s4, 7
          s_lshl_b32 s61, s5, 2
          s_add_u32 s60, s60, s61
          s_add_u32 s60, s60, {WS_FL}
          s_lshr_b32 s65, s4, 3
          s_add_u32 s65, s65, s61
          s_lshl_b32 s65, s65, 7
          s_and_b32 s61, s4, 7
          s_lshl_b32 s61, s61, 2
          s_add_u32 s65, s65, s61
          s_add_u32 s65, s65, {WS_FL + 4096}
          v_cmp_eq_u32 vcc, 0, v0
          v_mov_b32 v17, 0
          s_cmp_eq_u32 s6, 0
          v_cndmask_b32 v17, v3, v17, vcc
          s_cbranch_scc0 L_a_nsig''')
    lds_wait(a, 2, 80, 20, 66)
    a(f'''buffer_store_dword v73, v17, s[{WS}:{WS+3}], s60 offen sc1
          L_a_nsig:
          s_waitcnt lgkmcnt(0)''')
    if not FINE: a.stamp(2)
    a('s_barrier')
    a('s_barrier')
    a(f'''s_lshl_b32 s60, s6, 10
          s_add_u32 s60, s60, {14*1024}
          s_add_u32 s61, s60, {HALF_P*1024}
          v_mov_b32 v18, 1''')

    def bulk(n):
        for i in range(n):
            a(f'''s_mov_b32 m0, s60
                  s_nop 0
                  buffer_load_dwordx4 v1, s[{WS}:{WS+3}], s60 offen lds
                  s_mov_b32 m0, s61
                  s_add_u32 s60, s60, 4096
                  buffer_load_dwordx4 v1, s[{WS}:{WS+3}], s61 offen lds
                  s_add_u32 s61, s61, 4096''')
    bulk(5)
    a.srd(SA, 20, 2359296)
    a.srd(SB, 22, 2359296)
    a.srd(SC, 24, 4608)
    KK, VV, SK = 20, 40, 60
    a(f'''s_mul_i32 s62, s6, 18432
          s_add_u32 s62, s62, s18
          s_add_u32 s62, s62, s19
          v_lshlrev_b32 v4, 2, v0
          v_add_u32 v4, s62, v4
          v_cmp_gt_u32 vcc, 36, v0
          s_mul_i32 s63, s5, 576
          v_add_u32 v6, s63, v1
          v_cndmask_b32 v4, v3, v4, vcc
          v_cndmask_b32 v6, v3, v6, vcc
          v_subrev_u32 v5, 4608, v4
          buffer_load_dwordx4 v[{SK}:{SK+3}], v6, s[{SC}:{SC+3}], 0 offen
          s_mov_b32 s62, 0''')
    for j in range(4):
        a(f'buffer_load_dword v{KK+j}, v5, s[{SA}:{SA+3}], 0 offen offset:{1152*j}')
    a(f'buffer_load_dword v{VV}, v5, s[{SB}:{SB+3}], 0 offen offset:3456')
    for q in range(4):
        for j in range(4):
            a(f'buffer_load_dword v{KK+4+4*q+j}, v4, s[{SA}:{SA+3}], s62 offen offset:{1152*j}')
            a(f'buffer_load_dword v{VV+1+4*q+j}, v4, s[{SB}:{SB+3}], s62 offen offset:{1152*j}')
        a('s_add_u32 s62, s62, 4608')
    a('s_waitcnt vmcnt(38)\nds_write_b32 v19, v18 offset:128')
    bulk(10)
    if not FINE: a.stamp(3)
    L_ST = KV_BYTES
    a(f'''s_lshl_b32 s60, s6, 5
          s_sub_u32 s60, {L_ST + 96}, s60
          v_mul_u32_u24 v4, 288, v0
          v_add_u32 v4, s60, v4
          s_waitcnt vmcnt(10)
          ds_write_b32 v19, v18 offset:144''')
    X, S8, P = 64, 138, 20
    for j in range(37):
        a(f'v_lshlrev_b32 v{X+2*j}, 16, v{KK+j}')
        a(f'v_and_b32 v{X+2*j+1}, 0xffff0000, v{KK+j}')
    for i in range(4):
        src0, src1 = SK + (i >> 1), SK + 2 + (i >> 1)
        if i & 1:
            a(f'v_and_b32 v{S8+2*i}, 0xffff0000, v{src0}')
            a(f'v_and_b32 v{S8+2*i+1}, 0xffff0000, v{src1}')
        else:
            a(f'v_lshlrev_b32 v{S8+2*i}, 16, v{src0}')
            a(f'v_lshlrev_b32 v{S8+2*i+1}, 16, v{src1}')
    TMP = 146
    for tau in range(17):
        t = TMP + 2 * (tau % 4)
        a(f'v_pk_mul_f32 {vr(t,2)}, {vr(S8,2)}, {vr(X+2*(tau+3),2)}')
        for i in range(1, 4):
            a(f'v_pk_fma_f32 {vr(t,2)}, {vr(S8+2*i,2)}, {vr(X+2*(tau+3-i),2)}, {vr(t,2)}')
        u = X + 2 * (20 + tau)
        a(f'v_pk_mul_f32 {vr(u,2)}, {vr(t,2)}, {vr(u,2)}')
    for ch in range(2):
        U = lambda tau: X + 2 * (20 + tau) + ch
        for d in range(8):
            a(f'v_cvt_pk_bf16_f32 v{P+8*ch+d}, v{U(16-2*d)}, v{U(15-2*d)}')
    a(f'v_cvt_pk_bf16_f32 v36, v{X+40}, v{X+41}')
    a(f'''v_cmp_gt_u32 vcc, 36, v0
          s_and_saveexec_b64 s[62:63], vcc
          ds_write_b128 v4, {vr(P,4)}
          ds_write_b128 v4, {vr(P+4,4)} offset:16
          ds_write_b128 v4, {vr(P+8,4)} offset:144
          ds_write_b128 v4, {vr(P+12,4)} offset:160
          s_cmp_eq_u32 s6, 0
          s_cbranch_scc0 L_a_nx64
          ds_write_b16 v4, v36 offset:32
          ds_write_b16_d16_hi v4, v36 offset:176
          L_a_nx64:
          s_mov_b64 exec, s[62:63]
          s_waitcnt vmcnt(0) lgkmcnt(0)
          ds_write_b32 v19, v18 offset:96
          ds_write_b32 v19, v18 offset:160
          s_mul_i32 s60, s5, 72
          s_mul_i32 s61, s6, 18
          s_add_u32 s60, s60, s61
          s_mul_i32 s60, s60, {UR_CH}
          s_lshl_b32 s62, s4, 7
          s_sub_u32 s60, s60, s62
          s_add_u32 s60, s60, {WS_UR + 3968}
          s_add_u32 s62, s60, {UR_COPY}
          s_mul_i32 s61, s61, 144
          s_add_u32 s61, s61, {L_ST}
          v_lshrrev_b32 v5, 3, v0
          v_and_b32 v6, 7, v0
          v_lshlrev_b32 v6, 4, v6
          v_mul_u32_u24 v7, 144, v5
          v_add3_u32 v7, v7, v6, s61
          v_mul_u32_u24 v8, {UR_CH}, v5
          v_add_u32 v8, v8, v6
          v_add_u32 v9, {8*UR_CH}, v8
          v_add_u32 v10, {16*UR_CH}, v8
          v_cmp_gt_u32 vcc, 16, v0
          s_nop 1
          v_cndmask_b32 v10, v3, v10, vcc''')
    lds_wait(a, 2, 96, 40, 66)
    for m in range(3):
        a(f'ds_read_b128 {vr(40+8*m,4)}, v7 offset:{1152*m}')
        a(f'ds_read_b128 {vr(44+8*m,4)}, v7 offset:{1152*m+2}')
    for m in range(3):
        a(f'''s_waitcnt lgkmcnt({4-2*m})
              buffer_store_dwordx4 {vr(40+8*m,4)}, v{8+m}, s[{WS}:{WS+3}], s60 offen sc1
              buffer_store_dwordx4 {vr(44+8*m,4)}, v{8+m}, s[{WS}:{WS+3}], s62 offen sc1''')
    a(f'''ds_write_b32 v19, v18 offset:112
          v_mov_b32 v64, 0
          v_mov_b32 v65, 0
          v_mov_b32 v66, 0
          v_mov_b32 v67, 0
          s_cmp_eq_u32 s4, 0
          s_cbranch_scc0 L_a_nopad''')
    for m in range(3):
        a(f'buffer_store_dwordx4 v[64:67], v{8+m}, s[{WS}:{WS+3}], s60 offen offset:128 sc1')
        a(f'buffer_store_dwordx4 v[64:67], v{8+m}, s[{WS}:{WS+3}], s62 offen offset:128 sc1')
    a('L_a_nopad:')
    a(f'''s_waitcnt vmcnt(0)
          ds_write_b32 v19, v18 offset:208
          s_cmp_eq_u32 s6, 3
          s_cbranch_scc0 L_a_conv''')
    lds_wait(a, 2, 208, 40, 66)
    a(f'''buffer_store_dword v18, v17, s[{WS}:{WS+3}], s65 offen sc1
          v_bfe_u32 v21, v0, 1, 2
          v_lshlrev_b32 v21, 7, v21
          v_and_b32 v24, 1, v0
          v_lshl_add_u32 v21, v24, 4, v21
          s_lshl_b32 s60, s5, 9
          s_add_u32 s60, s60, {WS_FL+4096}
          s_mov_b32 s66, {SPIN}
          s_sleep 24
          L_a_upoll:
          buffer_load_dwordx4 v[24:27], v21, s[{WS}:{WS+3}], s60 offen sc1
          s_waitcnt vmcnt(0)
          v_and_b32 v24, v24, v25
          v_and_b32 v26, v26, v27
          v_and_b32 v24, v24, v26
          v_cmp_ne_u32 vcc, 1, v24
          s_cbranch_vccz L_a_uok2
          s_sleep 8
          s_sub_u32 s66, s66, 1
          s_cmp_lg_u32 s66, 0
          s_cbranch_scc1 L_a_upoll
          L_a_uok2:
          ds_write_b32 v2, v18 offset:224
          ds_write_b32 v19, v18 offset:176''')
    a.stamp(4)
    lds_wait(a, 2, 176, 40, 66, sleep=16)
    a(f'''s_add_u32 s65, s65, 8192
          buffer_store_dword v18, v17, s[{WS}:{WS+3}], s65 offen sc1
          s_branch L_a_hend
          L_a_conv:
          v_mov_b32 v16, v2''')
    a.stamp(4)
    AF, BF, ACC = 32, 64, 128
    aA, aB, aB0, aU, aY = 4, 5, 6, 7, 8
    DG = 12
    a(f'''s_lshl_b32 s60, s6, 5
          s_add_u32 s60, s60, s4
          s_cmp_ge_u32 s60, {0 if os.environ.get('NOCONV') else 72}
          s_cbranch_scc1 L_a_ydone
          s_mul_i32 s64, s5, 72
          s_add_u32 s64, s64, s60
          s_lshl_b32 s60, s64, 12
          s_add_u32 s{SA}, s26, s60
          s_addc_u32 s{SA+1}, s27, 0
          s_and_b32 s{SA+1}, s{SA+1}, 0xffff
          s_mov_b32 s{SA+2}, 4096
          s_mov_b32 s{SA+3}, 0x00020000
          s_mul_i32 s60, s64, {UR_CH}
          s_add_u32 s60, s60, {WS_UR}
          s_add_u32 s{SB}, s36, s60
          s_addc_u32 s{SB+1}, s37, 0
          s_and_b32 s{SB+1}, s{SB+1}, 0xffff
          s_mov_b32 s{SB+2}, {UR_CH}
          s_mov_b32 s{SB+3}, 0x00020000''')
    a.srd(SC, 28, 1152)
    a(f'''v_and_b32 v1, 15, v0
          v_bfe_u32 v2, v0, 4, 1
          v_lshrrev_b32 v23, 5, v0
          v_and_b32 v9, 7, v0
          v_bfe_u32 v10, v0, 3, 1
          v_lshl_or_b32 v9, v9, 1, v10
          v_lshlrev_b32 v11, 3, v2
          v_lshlrev_b32 v20, 4, v23
          v_sub_u32 v11, v11, v20
          v_sub_u32 v11, v11, v9
          v_add_u32 v11, 2047, v11
          v_lshlrev_b32 v11, 1, v11
          v_xor_b32 v20, 1, v10
          v_mul_u32_u24 v20, {UR_COPY-2}, v20
          v_add_u32 v11, v11, v20
          v_subrev_u32 v{aA}, {64*56}, v11
          v_sub_u32 v11, v1, v23
          v_lshlrev_b32 v11, 5, v11
          v_lshl_add_u32 v{aB0}, v2, 4, v11
          v_add_u32 v{aB}, 512, v{aB0}
          v_lshlrev_b32 v11, 5, v1
          v_lshlrev_b32 v20, 4, v2
          v_sub_u32 v11, v20, v11
          v_add_u32 v{aU}, {4064 - 512*7}, v11
          v_lshl_or_b32 v11, v2, 1, v23
          v_lshlrev_b32 v11, 3, v11
          v_lshl_add_u32 v{aY}, v1, 5, v11
          s_lshl_b32 s67, s64, 12
          s_add_u32 s67, s67, {WS_Y}
          s_lshl_b32 s60, s64, 1
          v_mov_b32 v21, s60
          buffer_load_ushort v22, v21, s[{SC}:{SC+3}], 0 offen''')

    def loadB(buf):
        a(f'buffer_load_dwordx4 {vr(BF+32*buf,4)}, v{aB0}, s[{SA}:{SA+3}], 0 offen')
        for d in range(1, 8):
            a(f'buffer_load_dwordx4 {vr(BF+32*buf+4*d,4)}, v{aB}, s[{SA}:{SA+3}], 0 offen offset:{512*(d-1)}')
    loadB(0)
    lds_wait(a, 16, 224, 24, 66, n=1, sleep=8)
    for c in range(8):
        a(f'buffer_load_dwordx4 {vr(BF+32+4*c,4)}, v{aU}, s[{SB}:{SB+3}], 0 offen offset:{512*(7-c)}')
    for i in range(8):
        a(f'buffer_load_dwordx4 {vr(AF+4*i,4)}, v{aA}, s[{SB}:{SB+3}], 0 offen offset:{64*(56-8*i)}')
    a(f'''v_lshlrev_b32 v11, 3, v2
          v_add_u32 v11, v11, v9
          v_sub_u32 v11, 15, v11
          v_lshl_add_u32 v11, v23, 4, v11
          v_and_b32 v20, 1, v11
          v_lshlrev_b32 v20, 4, v20
          v_lshrrev_b32 v11, 1, v11
          s_waitcnt vmcnt(24)
          v_lshlrev_b32 v22, v20, v22''')
    for d in range(4):
        a(f'''v_cmp_eq_u32 vcc, {d}, v11
              s_nop 1
              v_cndmask_b32 v{DG+d}, 0, v22, vcc''')
    a('s_waitcnt vmcnt(8)')
    a('s_nop 1')
    for c in range(8):
        a(f'v_mfma_f32_16x16x32_bf16 {vr(ACC+4*c,4)}, {vr(DG,4)}, {vr(BF+32+4*c,4)}, 0')
    a('s_mov_b32 s66, 4')
    a('s_setprio 0')
    a('L_a_cloop:')
    for buf in range(2):
        a(f'''v_subrev_u32 v{aA}, 64, v{aA}
              v_subrev_u32 v{aB}, 64, v{aB}
              v_subrev_u32 v{aB0}, 64, v{aB0}''')
        loadB(buf ^ 1)
        a('s_waitcnt vmcnt(8)')
        for i in range(7, -1, -1):
            for d in range(0, 8 - i):
                c = i + d
                a(f'v_mfma_f32_16x16x32_bf16 {vr(ACC+4*c,4)}, {vr(AF+4*i,4)}, {vr(BF+32*buf+4*d,4)}, {vr(ACC+4*c,4)}')
            a(f'buffer_load_dwordx4 {vr(AF+4*i,4)}, v{aA}, s[{SB}:{SB+3}], 0 offen offset:{64*(56-8*i)}')
    a('''s_sub_u32 s66, s66, 1
         s_cmp_lg_u32 s66, 0
         s_cbranch_scc1 L_a_cloop
         s_nop 7''')
    for c in range(8):
        x = ACC + 4 * c
        a(f'''v_permlane32_swap_b32 v{x}, v{x+2}
              v_permlane32_swap_b32 v{x+1}, v{x+3}
              v_cvt_pk_bf16_f32 v{x}, v{x}, v{x+2}
              v_cvt_pk_bf16_f32 v{x+1}, v{x+1}, v{x+3}
              buffer_store_dwordx2 {vr(x,2)}, v{aY}, s[{WS}:{WS+3}], s67 offen offset:{512*c} sc1''')
    a('''s_waitcnt vmcnt(0)
         L_a_ydone:
         ds_write_b32 v19, v18 offset:176''')
    a('L_a_hend:')
    a.stamp_out(0, WS)
    a('L_a_exit:\ns_endpgm')
    return a.text(), dict(name=NAME + '_kernel', grid=256, block=768, lds=LDS, vgpr=168, sgpr=102)


def gen_kb():
    a = Asm()
    L_W = 0
    L_S = 82944
    L_FL = L_S + 4 * 6144
    LDS = L_FL + 64
    WS, SX, SO = 40, 44, 52
    a('kb_kernel:')
    a.stamp(0); a.stamp(5, True)
    a(f'''s_cmp_ge_u32 s2, 256
          s_cbranch_scc1 L_b_exit
          s_load_dwordx2 s[36:37], s[0:1], 112
          s_load_dwordx2 s[8:9], s[0:1], 0
          s_load_dwordx2 s[12:13], s[0:1], 96
          v_lshrrev_b32 v1, 6, v0
          v_and_b32 v0, 63, v0
          v_readfirstlane_b32 s3, v1
          v_mov_b32 v2, {L_FL}
          v_and_b32 v4, 15, v0
          v_lshl_add_u32 v5, v4, 2, v2
          v_mov_b32 v6, 0
          ds_write_b32 v5, v6
          s_and_b32 s4, s2, 7
          s_lshr_b32 s5, s2, 6
          s_lshl_b32 s5, s5, 3
          s_or_b32 s4, s4, s5
          s_lshr_b32 s5, s2, 3
          s_and_b32 s5, s5, 7
          s_and_b32 s6, s3, 3
          s_mul_i32 s18, s4, 73728
          s_mul_i32 s19, s5, 144
          v_lshlrev_b32 v1, 4, v0
          s_mul_i32 s60, s6, 18432
          s_add_u32 s18, s18, s60
          s_cmp_ge_u32 s3, 4
          s_cbranch_scc1 L_b_load''')
    OF = 96
    a(f'''s_add_u32 s60, s18, {WS_O}
          s_add_u32 s61, s60, 4096
          s_add_u32 s62, s60, 8192
          s_add_u32 s63, s60, 12288
          s_add_u32 s64, s60, 16384
          s_waitcnt lgkmcnt(0)''')
    a.srd(WS, 36, WS_SIZE)
    for ks in range(18):
        a(f'buffer_load_dwordx4 {vr(OF+4*ks,4)}, v1, s[{WS}:{WS+3}], s{60+ks//4} offen offset:{1024*(ks%4)}')
    a('s_barrier')
    a.srd(SX, 8, 2359296)
    a.srd(SO, 12, 2359296)
    a(f'''v_mov_b32 v3, {OOB}
          s_mul_i32 s65, s6, 6144
          s_add_u32 s65, s65, {L_S}
          s_mul_i32 s60, s5, {72*4096}
          s_lshl_b32 s61, s4, 7
          s_add_u32 s60, s60, s61
          s_lshl_b32 s61, s6, 5
          s_add_u32 s60, s60, s61
          s_add_u32 s60, s60, {WS_Y}''')
    XA = 84
    for m in range(3):
        a(f'''v_add_u32 v8, {64*m}, v0
              v_mul_u32_u24 v9, 7282, v8
              v_lshrrev_b32 v9, 16, v9
              v_mul_u32_u24 v10, 9, v9
              v_sub_u32 v10, v8, v10
              v_lshlrev_b32 v10, 4, v10
              v_mul_u32_u24 v9, 1152, v9
              v_add3_u32 v{XA+m}, v9, v10, s19
              v_lshrrev_b32 v9, 1, v8
              v_and_b32 v10, 1, v8
              v_lshlrev_b32 v10, 4, v10
              v_cmp_gt_u32 vcc, 144, v8
              v_lshl_add_u32 v9, v9, 12, v10
              s_add_u32 s61, s65, {1024*m}
              v_cndmask_b32 v{XA+m}, v3, v{XA+m}, vcc
              v_cndmask_b32 v9, v3, v9, vcc
              s_mov_b32 m0, s61
              s_add_u32 s61, s61, 3072
              buffer_load_dwordx4 v{XA+m}, s[{SX}:{SX+3}], s18 offen lds
              s_mov_b32 m0, s61
              s_nop 0
              buffer_load_dwordx4 v9, s[{WS}:{WS+3}], s60 offen lds''')
    GV = 87
    a(f'''s_lshl_b32 s60, s4, 8
          s_lshl_b32 s61, s6, 6
          s_add_u32 s60, s60, s61
          s_add_u32 s60, s60, {WS_G}
          v_lshlrev_b32 v11, 2, v4
          buffer_load_dword v{GV}, v11, s[{WS}:{WS+3}], s60 offen
          s_mov_b32 s60, 0''')
    addr_trW(a, 14, L_W, 60, 10, 11)
    a(f'''v_add_u32 v15, {9*4608}, v14
          v_mul_u32_u24 v88, 144, v4
          v_lshrrev_b32 v11, 4, v0
          v_lshl_add_u32 v88, v11, 3, v88
          v_add_u32 v88, s65, v88
          v_lshlrev_b32 v89, 3, v0
          v_add_u32 v89, s65, v89
          v_add_u32 v90, s65, v1''')
    a.stamp(1)

    def gateB(ks):
        if ks % 6 == 0:
            lds_wait(a, 2, 16 * (ks // 6), 4, 66)
            if ks == 0:
                a('s_waitcnt vmcnt(7)')
                a.stamp(2)
            return True
        return False
    gemm5(a, 32, 8, 64, lambda ks, x: ((14, ks * 4608 + 32 * x) if ks < 9 else (15, (ks - 9) * 4608 + 32 * x)),
          lambda ks: OF + 4 * ks, lambda ks: None, gateB, look=6)
    a.stamp(3)
    a('s_waitcnt vmcnt(0)')
    for x in range(5):
        a(f'ds_read_b64 {vr(20+2*x,2)}, v88 offset:{32*x}')
        a(f'ds_read_b64_tr_b16 {vr(32+2*x,2)}, v89 offset:{3072+512*x}')
    a(f'v_sub_f32 v91, 1.0, v{GV}')
    for x in range(5):
        acc = 64 + 4 * x
        a(f's_waitcnt lgkmcnt({8-2*x+(x if x else 0)})' if False else f's_waitcnt lgkmcnt({8-2*x+x})')
        for r in range(4):
            xs, ys = 20 + 2 * x + (r >> 1), 32 + 2 * x + (r >> 1)
            t = 8 + 2 * (r & 1)
            if r & 1:
                a(f'v_and_b32 v{t}, 0xffff0000, v{xs}')
                a(f'v_and_b32 v{t+1}, 0xffff0000, v{ys}')
            else:
                a(f'v_lshlrev_b32 v{t}, 16, v{xs}')
                a(f'v_lshlrev_b32 v{t+1}, 16, v{ys}')
            a(f'''v_mul_f32 v{t}, v{t}, v{t+1}
                  v_mul_f32 v{t}, v{t}, v91
                  v_fma_f32 v{acc+r}, v{GV}, v{acc+r}, v{t}''')
        a(f'''v_cvt_pk_bf16_f32 v{acc}, v{acc}, v{acc+1}
              v_cvt_pk_bf16_f32 v{acc+1}, v{acc+2}, v{acc+3}''')
        if x == 4:
            a(f'''v_cmp_gt_u32 vcc, 32, v0
                  s_and_saveexec_b64 s[62:63], vcc
                  ds_write_b64 v88, {vr(acc,2)} offset:{32*x}
                  s_mov_b64 exec, s[62:63]''')
        else:
            a(f'ds_write_b64 v88, {vr(acc,2)} offset:{32*x}')
    for m in range(3):
        a(f'ds_read_b128 {vr(20+4*m,4)}, v90 offset:{1024*m}')
    for m in range(3):
        a(f'''s_waitcnt lgkmcnt({2-m})
              buffer_store_dwordx4 {vr(20+4*m,4)}, v{XA+m}, s[{SO}:{SO+3}], s18 offen''')
    a.stamp(4)
    a.stamp_out(1, WS)
    if STAMPS:
        WGD = int(os.environ.get('WGD', '0'))
        a(f'''s_cmp_eq_u32 s2, {WGD}
              s_cbranch_scc0 L_b_nodbg
              s_cmp_eq_u32 s3, 0
              s_cbranch_scc0 L_b_nodbg
              s_load_dwordx2 s[34:35], s[0:1], 104
              v_lshlrev_b32 v4, 2, v0
              v_cmp_gt_u32 vcc, 8, v0
              v_add_u32 v5, {8*32}, v4
              v_add_u32 v6, {4*32-32}, v4
              v_cndmask_b32 v5, v6, v5, vcc
              s_mov_b32 s60, {WS_DBG + WGD*16*32}
              buffer_load_dword v7, v5, s[{WS}:{WS+3}], s60 offen
              s_waitcnt vmcnt(0) lgkmcnt(0)''')
        a.srd(56, 34, 64)
        a(f'''v_mov_b32 v8, s94
              v_mov_b32 v9, s96
              v_cmp_eq_u32 vcc, 13, v0
              s_nop 1
              v_cndmask_b32 v7, v7, v8, vcc
              v_cmp_eq_u32 vcc, 15, v0
              s_nop 1
              v_cndmask_b32 v7, v7, v9, vcc
              buffer_store_dword v7, v4, s[56:59], 0 offen
              L_b_nodbg:''')
    a('s_endpgm')
    a('L_b_load:')
    a(f'''s_mul_i32 s62, s5, 82944
          s_add_u32 s62, s62, {WS_WO}
          s_lshl_b32 s63, s6, 10
          s_min_u32 s64, s6, 2
          s_lshl_b32 s64, s64, 10
          s_lshl_b32 s60, s6, 2
          v_add_u32 v19, s60, v2
          v_mov_b32 v18, 1
          s_waitcnt lgkmcnt(0)''')
    a.srd(WS, 36, WS_SIZE)
    a('s_barrier')

    def chunk(c):
        for m in range(7):
            a(f'''s_add_u32 s60, s{63 if m < 6 else 64}, {(27*c+4*m)*1024}
                  s_mov_b32 m0, s60
                  s_add_u32 s61, s60, s62
                  buffer_load_dwordx4 v1, s[{WS}:{WS+3}], s61 offen lds''')
    chunk(0); chunk(1)
    a('s_waitcnt vmcnt(7)\nds_write_b32 v19, v18')
    chunk(2)
    a('s_waitcnt vmcnt(7)\nds_write_b32 v19, v18 offset:16')
    a('s_waitcnt vmcnt(0)\nds_write_b32 v19, v18 offset:32')
    a.stamp_out(1, WS)
    a('L_b_exit:\ns_endpgm')
    return a.text(), dict(name='kb_kernel', grid=256, block=512, lds=LDS, vgpr=168, sgpr=102)


def main(out_path):
    ref = open(os.path.join(os.path.dirname(os.path.abspath(__file__)), '..', 'cdna_kernels', NAME + '.s.ref')).read()
    head = [l for l in ref.split('\n') if l.startswith(';') and '@launch' not in l and 'Override launch' not in l
            and 'grid=ceil' not in l]
    kernels = [gen_ka()]
    s = '\n'.join(head) + '\n'
    for _, k in kernels:
        s += f"; @launch grid=({k['grid']},1,1) block=({k['block']},1,1) lds={k['lds']}\n"
    s += '.amdgcn_target "amdgcn-amd-amdhsa--gfx950"\n.text\n'
    for t, k in kernels:
        s += f".globl {k['name']}\n.p2align 8\n.type {k['name']},@function\n" + t
    s += '.section .rodata,"a"\n'
    for _, k in kernels:
        s += f'''.p2align 6
.amdhsa_kernel {k['name']}
  .amdhsa_next_free_vgpr {k['vgpr']}
  .amdhsa_next_free_sgpr {k['sgpr']}
  .amdhsa_accum_offset {k['vgpr']}
  .amdhsa_group_segment_fixed_size 0
  .amdhsa_kernarg_size 120
  .amdhsa_user_sgpr_count 2
  .amdhsa_user_sgpr_kernarg_segment_ptr 1
  .amdhsa_system_sgpr_workgroup_id_x 1
.end_amdhsa_kernel
'''
    open(out_path, 'w').write(s)


if __name__ == '__main__':
    main(sys.argv[1] if len(sys.argv) > 1 else os.path.join(os.path.dirname(os.path.abspath(__file__)), '..', 'cdna_kernels', NAME + '.s'))
```

```python
import os, subprocess, sys
g = open('gen4.py').read().replace("op = 's_memrealtime' if real else 's_memtime'", "op = 's_memrealtime'")
open('gen4_rt.py','w').write(g)
env = dict(os.environ, STAMPS='1', MAINST='1')
subprocess.check_call(['python3','gen4_rt.py','rt.s'], env=env)
src = open('rt.s').read().replace('; @launch grid=', '; @launch kernel=gated_mix__grouped_kv_mqa__ssm_conv_h3__prompt_kernel grid=')
lb = [l for l in src.split('\n') if '@launch kernel=' in l][0]
WS_DBG = 0xC00000
def slot(k, wg, wave, i): return WS_DBG + ((k*256+wg)*16+wave)*32 + 4*i
def build(name, a, b, opa='max'):
    body = f'''    s_cmp_ge_u32 s2, 1
    s_cbranch_scc1 L_t_end
    s_memrealtime s[16:17]
    s_load_dwordx2 s[4:5], s[0:1], 112
    s_waitcnt lgkmcnt(0)
    s_mov_b32 s8, s4
    s_and_b32 s9, s5, 0xffff
    s_mov_b32 s10, 0x1000000
    s_mov_b32 s11, 0x00020000
    v_lshlrev_b32 v1, 9, v0
    v_add_u32 v2, {b}, v1
    v_add_u32 v1, {a}, v1
    s_mov_b32 s20, 32768
    s_mov_b32 s21, 65536
    s_mov_b32 s22, 98304
    buffer_load_dword v3, v1, s[8:11], 0 offen
    buffer_load_dword v4, v1, s[8:11], s20 offen
    buffer_load_dword v5, v1, s[8:11], s21 offen
    buffer_load_dword v6, v1, s[8:11], s22 offen
    buffer_load_dword v7, v2, s[8:11], 0 offen
    buffer_load_dword v8, v2, s[8:11], s20 offen
    buffer_load_dword v9, v2, s[8:11], s21 offen
    buffer_load_dword v10, v2, s[8:11], s22 offen
    s_waitcnt vmcnt(0)
    v_{opa}_u32 v3, v3, v4
    v_{opa}_u32 v5, v5, v6
    v_{opa}_u32 v3, v3, v5
    v_min_u32 v7, v7, v8
    v_min_u32 v9, v9, v10
    v_min_u32 v7, v7, v9
    s_nop 1
    v_readlane_b32 s14, v3, 0
    v_readlane_b32 s15, v7, 0
    s_mov_b32 s23, 1
L_t_red:
    v_readlane_b32 s24, v3, s23
    v_readlane_b32 s25, v7, s23
    s_{opa}_u32 s14, s14, s24
    s_min_u32 s15, s15, s25
    s_add_u32 s23, s23, 1
    s_cmp_lt_u32 s23, 64
    s_cbranch_scc1 L_t_red
    s_sub_u32 s12, s14, s15
    s_min_u32 s12, s12, 10000
    s_add_u32 s12, s12, 600
L_t_spin:
    s_memrealtime s[18:19]
    s_waitcnt lgkmcnt(0)
    s_sub_u32 s13, s18, s16
    s_cmp_lt_u32 s13, s12
    s_cbranch_scc1 L_t_spin
'''
    e = src.replace(lb, lb + '\n; @launch kernel=k4_kernel grid=(1,1,1) block=(64,1,1) lds=0')
    e = e.replace('.section .rodata', '.globl k4_kernel\n.p2align 8\n.type k4_kernel,@function\nk4_kernel:\n'+body+'L_t_end:\n    s_endpgm\n.section .rodata', 1)
    e += '''.p2align 6
.amdhsa_kernel k4_kernel
  .amdhsa_next_free_vgpr 16
  .amdhsa_next_free_sgpr 32
  .amdhsa_accum_offset 16
  .amdhsa_group_segment_fixed_size 0
  .amdhsa_kernarg_size 120
  .amdhsa_user_sgpr_count 2
  .amdhsa_user_sgpr_kernarg_segment_ptr 1
  .amdhsa_system_sgpr_workgroup_id_x 1
.end_amdhsa_kernel
'''
    open(name,'w').write(e)
W = 0
build('d0.s', slot(0,W,5,0), slot(0,W,5,0), 'min')
build('d1.s', slot(0,W,5,1), slot(0,W,5,0))
build('d2.s', slot(0,W,5,3), slot(0,W,5,0))
build('d3.s', slot(0,W,11,7), slot(0,W,5,0))
build('d4.s', slot(0,W,0,4), slot(0,W,5,0))
build('d5.s', slot(0,W,0,7), slot(0,W,5,0))
```

```python
import os, subprocess, sys
g = open('gen4.py').read().replace("op = 's_memrealtime' if real else 's_memtime'", "op = 's_memrealtime'")
open('gen4_rt.py','w').write(g)
env = dict(os.environ, STAMPS='1', MAINST='1')
subprocess.check_call(['python3','gen4_rt.py','rt.s'], env=env)
src = open('rt.s').read().replace('; @launch grid=', '; @launch kernel=gated_mix__grouped_kv_mqa__ssm_conv_h3__prompt_kernel grid=')
lb = [l for l in src.split('\n') if '@launch kernel=' in l][0]
WS_DBG = 0xC00000
DELTA = '    v_sub_u32 v3, v3, v7\n    v_sub_u32 v4, v4, v8\n    v_sub_u32 v5, v5, v9\n    v_sub_u32 v6, v6, v10\n    v_mov_b32 v7, 0\n'
def slot(k, wg, wave, i): return WS_DBG + ((k*256+wg)*16+wave)*32 + 4*i
def build(name, a, b, opa='max', delta=False, const=None):
    body = f'''    s_cmp_ge_u32 s2, 1
    s_cbranch_scc1 L_t_end
    s_memrealtime s[16:17]
    s_load_dwordx2 s[4:5], s[0:1], 112
    s_waitcnt lgkmcnt(0)
    s_mov_b32 s8, s4
    s_and_b32 s9, s5, 0xffff
    s_mov_b32 s10, 0x1000000
    s_mov_b32 s11, 0x00020000
    v_lshlrev_b32 v1, 9, v0
    v_add_u32 v2, {b}, v1
    v_add_u32 v1, {a}, v1
    s_mov_b32 s20, 32768
    s_mov_b32 s21, 65536
    s_mov_b32 s22, 98304
    buffer_load_dword v3, v1, s[8:11], 0 offen
    buffer_load_dword v4, v1, s[8:11], s20 offen
    buffer_load_dword v5, v1, s[8:11], s21 offen
    buffer_load_dword v6, v1, s[8:11], s22 offen
    buffer_load_dword v7, v2, s[8:11], 0 offen
    buffer_load_dword v8, v2, s[8:11], s20 offen
    buffer_load_dword v9, v2, s[8:11], s21 offen
    buffer_load_dword v10, v2, s[8:11], s22 offen
    s_waitcnt vmcnt(0)
{DELTA if delta else ''}    v_{opa}_u32 v3, v3, v4
    v_{opa}_u32 v5, v5, v6
    v_{opa}_u32 v3, v3, v5
    v_min_u32 v7, v7, v8
    v_min_u32 v9, v9, v10
    v_min_u32 v7, v7, v9
    s_nop 1
    v_readlane_b32 s14, v3, 0
    v_readlane_b32 s15, v7, 0
    s_mov_b32 s23, 1
L_t_red:
    v_readlane_b32 s24, v3, s23
    v_readlane_b32 s25, v7, s23
    s_{opa}_u32 s14, s14, s24
    s_min_u32 s15, s15, s25
    s_add_u32 s23, s23, 1
    s_cmp_lt_u32 s23, 64
    s_cbranch_scc1 L_t_red
    s_sub_u32 s12, s14, s15
    s_min_u32 s12, s12, 10000
{('    s_mov_b32 s12, %d' % const) if const is not None else ''}
    s_add_u32 s12, s12, 1000
L_t_spin:
    s_memrealtime s[18:19]
    s_waitcnt lgkmcnt(0)
    s_sub_u32 s13, s18, s16
    s_cmp_lt_u32 s13, s12
    s_cbranch_scc1 L_t_spin
'''
    e = src.replace(lb, lb + '\n; @launch kernel=k4_kernel grid=(1,1,1) block=(64,1,1) lds=0')
    e = e.replace('.section .rodata', '.globl k4_kernel\n.p2align 8\n.type k4_kernel,@function\nk4_kernel:\n'+body+'L_t_end:\n    s_endpgm\n.section .rodata', 1)
    e += '''.p2align 6
.amdhsa_kernel k4_kernel
  .amdhsa_next_free_vgpr 16
  .amdhsa_next_free_sgpr 32
  .amdhsa_accum_offset 16
  .amdhsa_group_segment_fixed_size 0
  .amdhsa_kernarg_size 120
  .amdhsa_user_sgpr_count 2
  .amdhsa_user_sgpr_kernarg_segment_ptr 1
  .amdhsa_system_sgpr_workgroup_id_x 1
.end_amdhsa_kernel
'''
    open(name,'w').write(e)
W = 0
build('d0.s', slot(0,W,5,0), slot(0,W,5,0), const=0)
build('d1.s', slot(0,W,5,0), slot(0,W,5,0), const=3000)
build('d2.s', slot(0,W,5,3), slot(0,W,5,1), 'max', delta=True)
build('d3.s', slot(0,W,5,3), slot(0,W,5,1), 'min', delta=True)
build('d4.s', slot(0,W,5,1), slot(0,W,5,0))
build('d5.s', slot(0,W,0,7), slot(0,W,5,0))
```

```python
import os, subprocess, sys
g = open('gen4.py').read().replace("op = 's_memrealtime' if real else 's_memtime'", "op = 's_memrealtime'")
open('gen4_rt.py','w').write(g)
env = dict(os.environ, STAMPS='1', MAINST='1')
subprocess.check_call(['python3','gen4_rt.py','rt.s'], env=env)
src = open('rt.s').read().replace('; @launch grid=', '; @launch kernel=gated_mix__grouped_kv_mqa__ssm_conv_h3__prompt_kernel grid=')
lb = [l for l in src.split('\n') if '@launch kernel=' in l][0]
WS_DBG = 0xC00000
DELTA = '    v_sub_u32 v3, v3, v7\n    v_sub_u32 v4, v4, v8\n    v_sub_u32 v5, v5, v9\n    v_sub_u32 v6, v6, v10\n    v_mov_b32 v7, 0\n'
def slot(k, wg, wave, i): return WS_DBG + ((k*256+wg)*16+wave)*32 + 4*i
def build(name, a, b, opa='max', delta=False, const=None, front=False, selfa=False, opb='min'):
    body = f'''    s_cmp_ge_u32 s2, 1
    s_cbranch_scc1 L_t_end
    s_memrealtime s[16:17]
    s_load_dwordx2 s[4:5], s[0:1], 112
    s_waitcnt lgkmcnt(0)
    s_mov_b32 s8, s4
    s_and_b32 s9, s5, 0xffff
    s_mov_b32 s10, 0x1000000
    s_mov_b32 s11, 0x00020000
    v_lshlrev_b32 v1, 9, v0
    v_add_u32 v2, {b}, v1
    v_add_u32 v1, {a}, v1
    s_mov_b32 s20, 32768
    s_mov_b32 s21, 65536
    s_mov_b32 s22, 98304
    buffer_load_dword v3, v1, s[8:11], 0 offen
    buffer_load_dword v4, v1, s[8:11], s20 offen
    buffer_load_dword v5, v1, s[8:11], s21 offen
    buffer_load_dword v6, v1, s[8:11], s22 offen
    buffer_load_dword v7, v2, s[8:11], 0 offen
    buffer_load_dword v8, v2, s[8:11], s20 offen
    buffer_load_dword v9, v2, s[8:11], s21 offen
    buffer_load_dword v10, v2, s[8:11], s22 offen
    s_waitcnt vmcnt(0)
{DELTA if delta else ''}    v_{opa}_u32 v3, v3, v4
    v_{opa}_u32 v5, v5, v6
    v_{opa}_u32 v3, v3, v5
    v_{opb}_u32 v7, v7, v8
    v_{opb}_u32 v9, v9, v10
    v_{opb}_u32 v7, v7, v9
    s_nop 1
    v_readlane_b32 s14, v3, 0
    v_readlane_b32 s15, v7, 0
    s_mov_b32 s23, 1
L_t_red:
    v_readlane_b32 s24, v3, s23
    v_readlane_b32 s25, v7, s23
    s_{opa}_u32 s14, s14, s24
    s_{opb}_u32 s15, s15, s25
    s_add_u32 s23, s23, 1
    s_cmp_lt_u32 s23, 64
    s_cbranch_scc1 L_t_red
{'    s_mov_b32 s14, s16' if selfa else ''}
    s_sub_u32 s12, s14, s15
    s_min_u32 s12, s12, 10000
{('    s_mov_b32 s12, %d' % const) if const is not None else ''}
    s_add_u32 s12, s12, 1000
L_t_spin:
    s_memrealtime s[18:19]
    s_waitcnt lgkmcnt(0)
    s_sub_u32 s13, s18, s16
    s_cmp_lt_u32 s13, s12
    s_cbranch_scc1 L_t_spin
'''
    e = src.replace(lb, lb + '\n; @launch kernel=k4_kernel grid=(1,1,1) block=(64,1,1) lds=0')
    e = e.replace('.section .rodata', '.globl k4_kernel\n.p2align 8\n.type k4_kernel,@function\nk4_kernel:\n'+body+'L_t_end:\n    s_endpgm\n.section .rodata', 1)
    e += '''.p2align 6
.amdhsa_kernel k4_kernel
  .amdhsa_next_free_vgpr 16
  .amdhsa_next_free_sgpr 32
  .amdhsa_accum_offset 16
  .amdhsa_group_segment_fixed_size 0
  .amdhsa_kernarg_size 120
  .amdhsa_user_sgpr_count 2
  .amdhsa_user_sgpr_kernarg_segment_ptr 1
  .amdhsa_system_sgpr_workgroup_id_x 1
.end_amdhsa_kernel
'''
    if front:
        e = e.replace(lb, '; @launch kernel=k5_kernel grid=(256,1,1) block=(64,1,1) lds=0\n' + lb)
        fb = f"""    s_cmp_ge_u32 s2, 256
    s_cbranch_scc1 L_f_end
    s_load_dwordx2 s[4:5], s[0:1], 112
    s_waitcnt lgkmcnt(0)
    s_mov_b32 s8, s4
    s_and_b32 s9, s5, 0xffff
    s_mov_b32 s10, 0x1000000
    s_mov_b32 s11, 0x00020000
    s_lshl_b32 s12, s2, 9
    s_add_u32 s12, s12, {slot(2,0,0,0)}
    s_memrealtime s[16:17]
    s_waitcnt lgkmcnt(0)
    v_mov_b32 v1, s16
    v_mov_b32 v2, 0
    buffer_store_dword v1, v2, s[8:11], s12 offen
L_f_end:
    s_endpgm
"""
        e = e.replace('.section .rodata', '.globl k5_kernel\n.p2align 8\n.type k5_kernel,@function\nk5_kernel:\n'+fb+'.section .rodata', 1)
        e += """.p2align 6
.amdhsa_kernel k5_kernel
  .amdhsa_next_free_vgpr 8
  .amdhsa_next_free_sgpr 32
  .amdhsa_accum_offset 8
  .amdhsa_group_segment_fixed_size 0
  .amdhsa_kernarg_size 120
  .amdhsa_user_sgpr_count 2
  .amdhsa_user_sgpr_kernarg_segment_ptr 1
  .amdhsa_system_sgpr_workgroup_id_x 1
.end_amdhsa_kernel
"""
    open(name,'w').write(e)
W = 0
build('d0.s', slot(0,W,5,0), slot(0,W,5,0), const=0)
build('d1.s', slot(0,W,5,0), slot(0,W,5,0), const=0, front=True)
build('d2.s', slot(0,W,0,0), slot(2,W,0,0), 'min', front=True, opb='max')
build('d3.s', slot(0,W,0,7), slot(0,W,0,7), selfa=True, opb='max')
build('d4.s', slot(0,W,11,0), slot(0,W,0,0), 'max')
build('d5.s', slot(0,W,0,7), slot(0,W,0,0), front=True)
```

```python
import os, subprocess, sys
g = open('gen4.py').read().replace("op = 's_memrealtime' if real else 's_memtime'", "op = 's_memrealtime'")
open('gen4_rt.py','w').write(g)
env = dict(os.environ, STAMPS='1', MAINST='1')
subprocess.check_call(['python3','gen4_rt.py','rt.s'], env=env)
src = open('rt.s').read().replace('; @launch grid=', '; @launch kernel=gated_mix__grouped_kv_mqa__ssm_conv_h3__prompt_kernel grid=')
lb = [l for l in src.split('\n') if '@launch kernel=' in l][0]
WS_DBG = 0xC00000
DELTA = '    v_sub_u32 v3, v3, v7\n    v_sub_u32 v4, v4, v8\n    v_sub_u32 v5, v5, v9\n    v_sub_u32 v6, v6, v10\n    v_mov_b32 v7, 0\n'
def slot(k, wg, wave, i): return WS_DBG + ((k*256+wg)*16+wave)*32 + 4*i
def build(name, a, b, opa='max', delta=False, const=None, front=False, selfa=False, opb='min'):
    body = f'''    s_cmp_ge_u32 s2, 1
    s_cbranch_scc1 L_t_end
    s_memrealtime s[16:17]
    s_load_dwordx2 s[4:5], s[0:1], 112
    s_waitcnt lgkmcnt(0)
    s_mov_b32 s8, s4
    s_and_b32 s9, s5, 0xffff
    s_mov_b32 s10, 0x1000000
    s_mov_b32 s11, 0x00020000
    v_lshlrev_b32 v1, 9, v0
    v_add_u32 v2, {b}, v1
    v_add_u32 v1, {a}, v1
    s_mov_b32 s20, 32768
    s_mov_b32 s21, 65536
    s_mov_b32 s22, 98304
    buffer_load_dword v3, v1, s[8:11], 0 offen
    buffer_load_dword v4, v1, s[8:11], s20 offen
    buffer_load_dword v5, v1, s[8:11], s21 offen
    buffer_load_dword v6, v1, s[8:11], s22 offen
    buffer_load_dword v7, v2, s[8:11], 0 offen
    buffer_load_dword v8, v2, s[8:11], s20 offen
    buffer_load_dword v9, v2, s[8:11], s21 offen
    buffer_load_dword v10, v2, s[8:11], s22 offen
    s_waitcnt vmcnt(0)
{DELTA if delta else ''}    v_{opa}_u32 v3, v3, v4
    v_{opa}_u32 v5, v5, v6
    v_{opa}_u32 v3, v3, v5
    v_{opb}_u32 v7, v7, v8
    v_{opb}_u32 v9, v9, v10
    v_{opb}_u32 v7, v7, v9
    s_nop 1
    v_readlane_b32 s14, v3, 0
    v_readlane_b32 s15, v7, 0
    s_mov_b32 s23, 1
L_t_red:
    v_readlane_b32 s24, v3, s23
    v_readlane_b32 s25, v7, s23
    s_{opa}_u32 s14, s14, s24
    s_{opb}_u32 s15, s15, s25
    s_add_u32 s23, s23, 1
    s_cmp_lt_u32 s23, 64
    s_cbranch_scc1 L_t_red
{'    s_mov_b32 s14, s16' if selfa else ''}
    s_sub_u32 s12, s14, s15
    s_min_u32 s12, s12, 10000
{('    s_mov_b32 s12, %d' % const) if const is not None else ''}
    s_add_u32 s12, s12, 1000
L_t_spin:
    s_memrealtime s[18:19]
    s_waitcnt lgkmcnt(0)
    s_sub_u32 s13, s18, s16
    s_cmp_lt_u32 s13, s12
    s_cbranch_scc1 L_t_spin
'''
    e = src.replace(lb, lb + '\n; @launch kernel=k4_kernel grid=(1,1,1) block=(64,1,1) lds=0')
    e = e.replace('.section .rodata', '.globl k4_kernel\n.p2align 8\n.type k4_kernel,@function\nk4_kernel:\n'+body+'L_t_end:\n    s_endpgm\n.section .rodata', 1)
    e += '''.p2align 6
.amdhsa_kernel k4_kernel
  .amdhsa_next_free_vgpr 16
  .amdhsa_next_free_sgpr 32
  .amdhsa_accum_offset 16
  .amdhsa_group_segment_fixed_size 0
  .amdhsa_kernarg_size 120
  .amdhsa_user_sgpr_count 2
  .amdhsa_user_sgpr_kernarg_segment_ptr 1
  .amdhsa_system_sgpr_workgroup_id_x 1
.end_amdhsa_kernel
'''
    if front:
        e = e.replace(lb, '; @launch kernel=k5_kernel grid=(256,1,1) block=(64,1,1) lds=0\n' + lb)
        fb = f"""    s_cmp_ge_u32 s2, 256
    s_cbranch_scc1 L_f_end
    s_load_dwordx2 s[4:5], s[0:1], 112
    s_waitcnt lgkmcnt(0)
    s_mov_b32 s8, s4
    s_and_b32 s9, s5, 0xffff
    s_mov_b32 s10, 0x1000000
    s_mov_b32 s11, 0x00020000
    s_lshl_b32 s12, s2, 9
    s_add_u32 s12, s12, {slot(2,0,0,0)}
    s_memrealtime s[16:17]
    s_waitcnt lgkmcnt(0)
    v_mov_b32 v1, s16
    v_mov_b32 v2, 0
    buffer_store_dword v1, v2, s[8:11], s12 offen
L_f_end:
    s_endpgm
"""
        e = e.replace('.section .rodata', '.globl k5_kernel\n.p2align 8\n.type k5_kernel,@function\nk5_kernel:\n'+fb+'.section .rodata', 1)
        e += """.p2align 6
.amdhsa_kernel k5_kernel
  .amdhsa_next_free_vgpr 8
  .amdhsa_next_free_sgpr 32
  .amdhsa_accum_offset 8
  .amdhsa_group_segment_fixed_size 0
  .amdhsa_kernarg_size 120
  .amdhsa_user_sgpr_count 2
  .amdhsa_user_sgpr_kernarg_segment_ptr 1
  .amdhsa_system_sgpr_workgroup_id_x 1
.end_amdhsa_kernel
"""
    open(name,'w').write(e)
W = 0
build('d0.s', slot(0,W,5,0), slot(0,W,5,0), const=0)
build('d1.s', slot(0,W,8,1), slot(0,W,0,0))
build('d2.s', slot(0,W,8,2), slot(0,W,0,0))
build('d3.s', slot(0,W,1,1), slot(0,W,0,0))
build('d4.s', slot(0,W,1,3), slot(0,W,0,0))
build('d5.s', slot(0,W,5,7), slot(0,W,0,0))
```
